```python
import torch

def _softmax(x, axis=-1):
    return torch.softmax(x, dim=axis)
def _gelu(x):
    return torch.nn.functional.gelu(x, approximate="tanh")
def _silu(x):
    return torch.nn.functional.silu(x)
def _sigmoid(x):
    return torch.sigmoid(x)
def _layernorm(x, axis=-1, eps=1e-5):
    m = x.mean(dim=axis, keepdim=True)
    v = x.var(dim=axis, keepdim=True, unbiased=False)
    return (x - m) / torch.sqrt(v + eps)
def _scatter_add(tgt, idx, src, axis=0):
    return tgt.clone().index_add_(axis, idx, src)
def _segment_sum(src, seg, n):
    out = torch.zeros((n,) + src.shape[1:], dtype=src.dtype)
    return out.index_add_(0, seg, src)
def _pad(x, pw):
    flat = tuple(v for pair in reversed(pw) for v in pair)
    return torch.nn.functional.pad(x, flat)

kernel_name = 'parallel_sum__ssm_conv_h3__glu_gated_geglu__prompt'

def setup_inputs():

    _w = (lambda a: (lambda t: t.to(torch.bfloat16) if t.is_floating_point() else t)(torch.as_tensor(a)))
    def _A_setup():
        B, S, D = 1, 2048, 512
        ks = 4
        return {
            "q": _w((lambda *s: torch.randn(*s, dtype=torch.bfloat16) * 0.05)(B, S, D)),
            "k": _w((lambda *s: torch.randn(*s, dtype=torch.bfloat16) * 0.2)(B, S, D)),
            "v": _w((lambda *s: torch.randn(*s, dtype=torch.bfloat16) * 0.2)(B, S, D)),
            "shift_k": _w((lambda *s: torch.randn(*s, dtype=torch.bfloat16) * 0.2)(D, ks) * 0.5),
            "ssm_k": _w((lambda *s: torch.randn(*s, dtype=torch.bfloat16) * 0.4)(D, S) * (1.0 / S ** 0.5)),
            "ssm_D": _w((lambda *s: torch.randn(*s, dtype=torch.bfloat16) * 0.2)(D)),
        }
    _A_in = _A_setup()

    def _B_setup():
        B, S, Dm, Df = 1, 2048, 512, 1792
        return {
            "x": _w((lambda *s: torch.randn(*s, dtype=torch.bfloat16) * 0.05)(B, S, Dm)),
            "w_gate": _w((lambda *s: torch.randn(*s, dtype=torch.bfloat16) * 0.4)(Dm, Df) * (Dm ** -0.5)),
            "w_up": _w((lambda *s: torch.randn(*s, dtype=torch.bfloat16) * 0.4)(Dm, Df) * (Dm ** -0.5)),
            "w_down": _w((lambda *s: torch.randn(*s, dtype=torch.bfloat16) * 0.4)(Df, Dm) * (Df ** -0.5)),
        }
    _B_in = _B_setup()

    return {
        "A_q": _A_in["q"],
        "A_k": _A_in["k"],
        "A_v": _A_in["v"],
        "A_shift_k": _A_in["shift_k"],
        "A_ssm_k": _A_in["ssm_k"],
        "A_ssm_D": _A_in["ssm_D"],
        "B_x": _B_in["x"],
        "B_w_gate": _B_in["w_gate"],
        "B_w_up": _B_in["w_up"],
        "B_w_down": _B_in["w_down"],
    }

def reference(A_q, A_k, A_v, A_shift_k, A_ssm_k, A_ssm_D, B_x, B_w_gate, B_w_up, B_w_down):
    def _A_ref(q, k, v, shift_k, ssm_k, ssm_D):
        B, S, D = q.shape
        ks = shift_k.shape[-1]
        k_pad = _pad(k, ((0, 0), (ks - 1, 0), (0, 0)))
        k_shift = torch.zeros_like(k)
        for t in range(ks):
            k_shift = k_shift + k_pad[:, t:t + S, :] * shift_k[:, ks - 1 - t][None, None, :]
        kv = k_shift * v
        L = 2 * S
        kv_pad = _pad(kv, ((0, 0), (0, S), (0, 0)))
        kf_pad = _pad(ssm_k, ((0, 0), (0, S)))
        kv_f = (lambda x, axes=(-2,-1): torch.fft.rfft2(x.float(), dim=axes))(kv_pad[:, None, :, :], axes=(1, 2))
        kf_f = (lambda x, axes=(-2,-1): torch.fft.rfft2(x.float(), dim=axes))(kf_pad[:, None, :], axes=(1, 2))
        kf_f = (lambda x, *d: x.permute(*d))(kf_f, 1, 2, 0)
        y_f = kv_f * kf_f[None, :, :, :]
        y = (lambda x, s, axes=(-2,-1): torch.fft.irfft2(x, s=s, dim=axes).to(torch.bfloat16))(y_f, (1, L), axes=(1, 2))[:, 0, :S, :]
        y = y + kv * ssm_D[None, None, :]
        return q * y

    def _B_ref(x, w_gate, w_up, w_down):
        g = torch.einsum("bsd,df->bsf", x, w_gate)
        u = torch.einsum("bsd,df->bsf", x, w_up)
        h = _gelu(g) * u
        return torch.einsum("bsf,fd->bsd", h, w_down)

    x = A_q
    xn = _layernorm(x, axis=-1)
    return x + _A_ref(xn, A_k, A_v, A_shift_k, A_ssm_k, A_ssm_D) + _B_ref(xn, B_w_gate, B_w_up, B_w_down)
```

```python
import re

def _regs(tok):
    tok = tok.strip()
    tok = tok.lstrip('-')
    m = re.match(r'abs\((.*)\)', tok) or re.match(r'\|(.*)\|', tok)
    if m: tok = m.group(1)
    m = re.fullmatch(r'([vsa])(\d+)', tok)
    if m: return {(m.group(1), int(m.group(2)))}
    m = re.fullmatch(r'([vsa])\[(\d+):(\d+)\]', tok)
    if m: return {(m.group(1), i) for i in range(int(m.group(2)), int(m.group(3)) + 1)}
    if tok == 'vcc': return {('s', 106), ('s', 107)}
    if tok == 'vcc_lo': return {('s', 106)}
    if tok == 'vcc_hi': return {('s', 107)}
    if tok == 'exec': return {('s', 126), ('s', 127)}
    if tok == 'm0': return {('s', 124)}
    if tok == 'exec_hi': return {('s', 127)}
    if tok == 'exec_lo': return {('s', 126)}
    return set()

TRANS = ('v_exp_f32', 'v_log_f32', 'v_rcp_f32', 'v_rsq_f32', 'v_sqrt_f32', 'v_sin_f32', 'v_cos_f32', 'v_rcp_iflag_f32')

class Ins:
    def __init__(self, text):
        self.text = text
        t = text.split(';')[0].strip()
        parts = t.split(None, 1)
        self.op = parts[0]
        rest = parts[1] if len(parts) > 1 else ''
        ops = [o.strip() for o in rest.split(',')]
        mods = ''
        if ops:
            sp = ops[-1].split(None, 1)
            newops = []
            for o in ops:
                s = o.split(None, 1)
                newops.append(s[0] if s else '')
                if len(s) > 1: mods += ' ' + s[1]
            ops = newops
        self.ops = ops
        self.mods = mods
        op = self.op
        R = [_regs(o) for o in ops]
        self.w = set(); self.r = set()
        self.kind = 'other'
        self.states = 1
        self.passes = 0
        U = lambda l: set().union(*l) if l else set()
        if op == 's_nop':
            self.states = int(ops[0], 0) + 1
            self.kind = 'nop'
        elif op.startswith('v_mfma'):
            self.kind = 'mfma'
            self.passes = 8 if '32x32x16' in op else 4
            self.w = R[0]; self.ab = R[1] | R[2]; self.c = R[3]; self.r = self.ab | self.c
        elif op.startswith('v_'):
            self.kind = 'valu'
            self.trans = any(op.startswith(x) for x in TRANS)
            self.dpp = ('_dpp' in op) or ('row_' in mods) or ('quad_perm' in mods)
            self.perml = op.startswith('v_permlane')
            self.rdlane = op.startswith('v_readfirstlane') or op.startswith('v_readlane')
            if op.startswith('v_cmp'):
                self.w = R[0]; self.r = U(R[1:])
                if op.startswith('v_cmpx'): self.w |= _regs('exec')
            elif self.perml and 'swap' in op:
                self.w = R[0] | R[1]; self.r = R[0] | R[1]
            elif op.startswith(('v_add_co', 'v_sub_co', 'v_subrev_co', 'v_addc_co', 'v_subb_co')):
                self.w = R[0] | R[1]; self.r = U(R[2:])
            else:
                self.w = R[0]; self.r = U(R[1:])
                if op.startswith(('v_fmac', 'v_dot2c', 'v_pk_fmac', 'v_writelane')) or self.dpp or 'sdwa' in op: self.r |= R[0]
                if op.startswith('v_cndmask') and len(ops) == 3: self.r |= _regs('vcc')
        elif op.startswith('ds_'):
            self.kind = 'ds'
            if op.startswith(('ds_read', 'ds_bpermute', 'ds_permute', 'ds_swizzle')) or '_rtn' in op:
                self.w = R[0]; self.r = U(R[1:])
            else:
                self.r = U(R)
        elif op.startswith('buffer_') or op.startswith('global_'):
            self.kind = 'vmem'
            self.lds = (' lds' in (' ' + mods)) or op.startswith('global_load_lds')
            self.wide_store = False
            if op in ('buffer_inv', 'buffer_wbl2'):
                pass
            elif 'load' in op and not self.lds:
                self.w = R[0]; self.r = U(R[1:])
            elif 'atomic' in op and 'sc0' in mods:
                self.w = R[0]; self.r = U(R)
            else:
                self.r = U(R)
                if 'store' in op and op.endswith(('x3', 'x4')):
                    self.wide_store = True
                    self.data = R[0] if op.startswith('buffer') else R[1]
            if self.lds: self.r |= _regs('m0')
        elif op.startswith('s_'):
            self.kind = 'salu'
            if op.startswith(('s_cmp', 's_cbranch', 's_branch', 's_waitcnt', 's_barrier', 's_sleep', 's_setprio', 's_endpgm', 's_bitcmp')):
                self.r = U(R)
            else:
                self.w = R[0]; self.r = U(R[1:])
                if 'saveexec' in op: self.w |= _regs('exec')

def need(p, c):
    n = 0
    vw = {x for x in p.w if x[0] in 'va'}
    sw = {x for x in p.w if x[0] == 's'}
    if p.kind == 'valu':
        if sw:
            if c.kind == 'vmem' and sw & c.r: n = max(n, 5)
            if c.kind == 'valu' and sw & c.r: n = max(n, 4 if c.op.startswith(('v_readlane', 'v_writelane')) else 2)
            if c.kind == 'salu' and sw & c.r: n = max(n, 1)
            if sw & _regs('exec'):
                if c.kind == 'valu' and (c.dpp): n = max(n, 5)
                if c.kind == 'valu' and (c.perml or c.rdlane): n = max(n, 4)
                if c.kind == 'mfma': n = max(n, 4)
        if vw:
            if c.kind == 'mfma' and vw & c.r: n = max(n, 2)
            if c.kind == 'valu' and vw & c.r:
                if c.dpp or c.perml: n = max(n, 2)
                if c.rdlane: n = max(n, 1)
                if p.trans and not c.trans: n = max(n, 1)
                if 'sdwa' in p.op or 'op_sel' in p.mods and not p.op.startswith('v_pk'): n = max(n, 1)
                if p.op.startswith('v_dot'):
                    if not (c.op == p.op and not (vw & (c.r - c.w))): n = max(n, 3)
            if p.op.startswith('v_dot') and c.kind in ('ds', 'vmem', 'mfma') and vw & c.r: n = max(n, 3)
            if p.op.startswith('v_dot') and c.kind == 'valu' and c.op != p.op and vw & c.w: n = max(n, 3)
    if p.kind == 'salu' and ('s', 124) in p.w:
        if c.kind == 'vmem' and getattr(c, 'lds', False): n = max(n, 1)
        if c.op.startswith('s_movrel') or 'addtid' in c.op: n = max(n, 1)
    if p.kind == 'mfma':
        big = {8: 12, 4: 8}[p.passes]
        if c.kind == 'mfma':
            if p.w & c.ab: n = max(n, big)
            if p.w & c.c and not (p.w == c.c and p.passes == c.passes): n = max(n, {8: 10, 4: 6}[p.passes])
            if p.w & c.w and not (p.w & c.c): n = max(n, big)
        elif c.kind in ('valu', 'ds', 'vmem'):
            if p.w & (c.r | c.w): n = max(n, big)
            if c.kind == 'valu' and p.c & c.w: n = max(n, {8: 7, 4: 3}[p.passes])
    if p.kind == 'vmem' and getattr(p, 'wide_store', False):
        if p.data & c.w: n = max(n, 2 if c.kind in ('valu', 'mfma') else 1)
    return n

class Em:
    def __init__(self):
        self.lines = []
        self.hist = []
        self.nlab = 0
    def raw(self, s):
        self.lines.append(s)
    def label(self, name, safe=True):
        self.lines.append(name + ':')
    def newlabel(self, p='L'):
        self.nlab += 1
        return f'{p}_{self.nlab}'
    def c(self, s):
        self.lines.append('; ' + s)
    def __call__(self, text):
        for t in text.strip().split('\n'):
            t = t.strip()
            if not t: continue
            if t.startswith(';'):
                self.lines.append(t); continue
            if t.endswith(':'):
                self.label(t[:-1]); continue
            ins = Ins(t)
            dist = 0
            pad = 0
            for p in reversed(self.hist[-24:]):
                nn = need(p, ins)
                if nn > dist: pad = max(pad, nn - dist)
                dist += p.states
                if dist >= 20: break
            while pad > 0:
                k = min(pad, 16)
                nop = Ins(f's_nop {k-1}')
                self.lines.append('    ' + nop.text)
                self.hist.append(nop)
                pad -= k
            self.lines.append('    ' + t)
            self.hist.append(ins)
    def fence(self, n=12):
        self(f's_nop {n-1}')
    def text(self):
        return '\n'.join(self.lines) + '\n'
```

```python
import sys, struct
from emit import Em

NAME = 'parallel_sum__ssm_conv_h3__glu_gated_geglu__prompt_kernel'

WS_EPOCH = 0
WS_FKV = 0x1000
WS_FH = 0x2000
WS_FY = 0x8000
WS_STATS = 0x10000
WS_CS = 0x20000
WS_KVT = 0x100000
WS_YS = 0x300000
WS_HS = 0x500000
WS_DBG = 0xD00000
WS_SIZE = 0xE00000

SLOT = [65536, 16384, 114688]
L_CSF = 0
L_MF = 4096
L_RS = 12288
L_NONCE = 13312
IMG = 16384
HE_SZ = 4160
HO_OFF = 4160
KV_OFF = 8448
CH_SZ = 13056
L_CNT = 47104
XBLK = [0, 8192, 49152, 57344]
LDS_TOTAL = 163840

def f2u(x):
    return struct.unpack('<I', struct.pack('<f', x))[0]

K1C = -2.0 * 1.4426950408889634 * 0.7978845608028654
K2C = K1C * 0.044715
TAGX = 0x5bd1e995
POLL_LIMIT = 200000

class VM:
    def __init__(self): self.n = 0
    def issue(self, k=1):
        self.n += k; return self.n
    def wait(self, e, tok):
        c = self.n - tok
        assert 0 <= c <= 63, c
        e(f's_waitcnt vmcnt({c})')

class Gen:
    def __init__(self, stamps=False, opt=None):
        self.e = Em()
        self.stamps = stamps
        self.opt = opt or {}

    def srd(self, d, ptr, size):
        e = self.e
        e(f's_mov_b32 s{d}, s{ptr}\ns_mov_b32 s{d+1}, s{ptr+1}\ns_mov_b32 s{d+2}, {size}\ns_mov_b32 s{d+3}, 0x20000')

    def stamp(self, k):
        if self.stamps:
            self.e(f's_memtime s[98:99]\ns_waitcnt lgkmcnt(0)\ns_mov_b32 s{80+k}, s98')

    def dump_stamps(self):
        if not self.stamps: return
        e = self.e
        e('s_waitcnt vmcnt(0) lgkmcnt(0)')
        self.stamp(15)
        e('s_lshl_b32 s60, s2, 3\ns_add_u32 s60, s60, s30\ns_lshl_b32 s60, s60, 6\ns_add_u32 s60, s60, %d' % WS_DBG)
        e('v_mov_b32 v1, 0')
        for g in range(4):
            for i in range(4):
                e(f'v_mov_b32 v{4+i}, s{80+4*g+i}')
            e(f'buffer_store_dwordx4 v[4:7], v1, s[40:43], s60 offen offset:{16*g}')
        e('s_waitcnt vmcnt(0)')

    def poll64(self, vaddr, soff, t, sleep=1):
        e = self.e
        L = e.newlabel('POLL'); D = e.newlabel('POLLD')
        e(f's_mov_b32 s72, {POLL_LIMIT}')
        e(f'{L}:')
        e(f'buffer_load_dwordx2 v[{t}:{t+1}], v{vaddr}, s[40:43], {soff} offen sc1')
        e('s_waitcnt vmcnt(0)')
        e(f'v_cmp_ne_u64 vcc, s[70:71], v[{t}:{t+1}]')
        e(f's_cbranch_vccz {D}')
        e(f's_sleep {sleep}')
        e('s_sub_u32 s72, s72, 1')
        e('s_cmp_lg_u32 s72, 0')
        e(f's_cbranch_scc1 {L}')
        e(f'{D}:')

    def get_nonce_blocking(self, t):
        e = self.e
        L = e.newlabel('NON'); D = e.newlabel('NOND')
        e(f's_mov_b32 s72, {POLL_LIMIT}')
        e(f'v_mov_b32 v{t+2}, 0')
        e(f'{L}:')
        e(f'buffer_load_dwordx2 v[{t}:{t+1}], v{t+2}, s[56:59], 0 offen sc1')
        e('s_waitcnt vmcnt(0)')
        e(f'v_readfirstlane_b32 s70, v{t}')
        e(f'v_readfirstlane_b32 s71, v{t+1}')
        e('s_cmp_lg_u32 s71, 0')
        e(f's_cbranch_scc1 {D}')
        e('s_sleep 2')
        e('s_sub_u32 s72, s72, 1')
        e('s_cmp_lg_u32 s72, 0')
        e(f's_cbranch_scc1 {L}')
        e(f'{D}:')
        e(f's_xor_b32 s71, s70, {TAGX}')

    def store_flag(self, soff_reg, t):
        e = self.e
        e(f'v_mov_b32 v{t}, s70\nv_mov_b32 v{t+1}, s71\nv_mov_b32 v{t+2}, 0')
        e('s_mov_b64 exec, 1')
        e(f'buffer_store_dwordx2 v[{t}:{t+1}], v{t+2}, s[40:43], {soff_reg} offen sc1')
        e('s_mov_b64 exec, -1')

    def prologue(self):
        e = self.e
        e('s_cmp_ge_u32 s2, 256')
        e('s_cbranch_scc1 L_END')
        e('s_load_dwordx16 s[4:19], s[0:1], 0')
        e('s_load_dwordx8 s[20:27], s[0:1], 64')
        e('s_load_dwordx2 s[28:29], s[0:1], 96')
        if self.stamps:
            e('s_memtime s[98:99]')
        e('v_lshrrev_b32 v1, 6, v0')
        e('v_and_b32 v0, 63, v0')
        e('v_readfirstlane_b32 s30, v1')
        e('s_and_b32 s31, s2, 7')
        e('s_lshr_b32 s32, s2, 3')
        e('s_cmp_lg_u32 s30, 0')
        e('s_cbranch_scc1 L_NOPF')
        e('s_getpc_b64 s[60:61]')
        e('L_PC:')
        e('v_lshlrev_b32 v1, 5, v0')
        e('v_add_u32 v1, s32, v1')
        e('v_lshlrev_b32 v1, 7, v1')
        e('v_cmp_gt_u32 vcc, L_END-L_PC, v1')
        e('s_and_saveexec_b64 s[62:63], vcc')
        e('s_cbranch_execz L_PFX')
        e('global_load_dword v79, v1, s[60:61]')
        e('L_PFX:')
        e('s_mov_b64 exec, s[62:63]')
        e('L_NOPF:')
        e('s_and_b32 s39, s32, 3')
        e('s_lshr_b32 s38, s32, 2')
        e('s_lshl_b32 s37, s31, 2')
        e('s_add_u32 s37, s37, s39')
        e('s_lshr_b32 s60, s31, 2')
        e('s_and_b32 s61, s31, 3')
        e('s_lshl_b32 s34, s60, 2')
        e('s_add_u32 s34, s34, s39')
        e('s_mul_i32 s35, s61, 7')
        e('s_add_u32 s35, s35, s38')
        e('s_lshl_b32 s36, s61, 1')
        e('s_lshl_b32 s60, s60, 2')
        e('s_add_u32 s36, s36, s60')
        e('s_and_b32 s36, s36, 7')
        e('s_waitcnt lgkmcnt(0)')
        if self.stamps:
            e('s_mov_b32 s80, s98')
            for k in range(1, 16): e(f's_mov_b32 s{80+k}, 0')
            e('s_memrealtime s[98:99]\ns_waitcnt lgkmcnt(0)\ns_mov_b32 s94, s98')
        self.srd(40, 28, WS_SIZE)
        self.srd(44, 4, 2097152)
        e('s_cmp_ge_u32 s32, 28')
        e('s_cbranch_scc1 L_SPARE')
        e('s_cmp_ge_u32 s30, 4')
        e('s_cbranch_scc1 L_HELP')

    def g1_mfma(self):
        e = self.e
        ACC = 128; FR = 80
        XA = [16, 24]; WA = [20, 28]
        e('v_and_b32 v1, 31, v0')
        e('v_lshrrev_b32 v2, 5, v0')
        e('v_bfe_u32 v3, v1, 1, 3')
        e('v_xor_b32 v3, v3, v2')
        e('v_lshlrev_b32 v3, 4, v3')
        e('v_lshl_add_u32 v3, v1, 7, v3')
        e('s_lshl_b32 s60, s30, 13')
        e('s_add_u32 s60, s60, 16384')
        e('v_add_u32 v16, s60, v3')
        for ks in range(1, 4): e(f'v_xor_b32 v{16+ks}, {ks*32}, v16')
        e('v_bfe_u32 v3, v0, 2, 2')
        e('v_bfe_u32 v4, v0, 1, 1')
        e('v_and_b32 v5, 1, v0')
        e('v_bfe_u32 v6, v0, 4, 1')
        e('v_lshrrev_b32 v7, 1, v3')
        e('v_lshlrev_b32 v7, 1, v7')
        e('v_lshl_add_u32 v7, v4, 2, v7')
        e('v_xor_b32 v7, v7, v5')
        e('v_lshlrev_b32 v7, 4, v7')
        e('v_lshl_add_u32 v7, v6, 3, v7')
        e('v_lshl_add_u32 v3, v2, 3, v3')
        e('v_lshl_add_u32 v7, v3, 7, v7')
        e('v_lshl_add_u32 v7, v4, 13, v7')
        e(f'v_add_u32 v20, {16384+32768}, v7')
        for j in range(1, 4): e(f'v_xor_b32 v{20+j}, {j*32}, v20')
        for i in range(8): e(f'v_add_u32 v{24+i}, {114688-16384}, v{16+i}')
        for i in range(128): e(f'v_mov_b32 v{ACC+i}, 0')

        def frag(st, which):
            return FR + st * 24 + which * 4
        def reads(ls, ks, st):
            base = SLOT[ls % 3]
            s = 1 if base == 114688 else 0
            off = base - (114688 if s else 16384)
            def X(tt):
                d = frag(st, tt)
                return [f'ds_read_b128 v[{d}:{d+3}], v{XA[s]+ks} offset:{off + tt*4096}']
            def W(j):
                d = frag(st, 2 + j)
                return [f'ds_read_b64_tr_b16 v[{d+2*t}:{d+2*t+1}], v{WA[s]+j} offset:{off + (16*ks+4*t)*128}' for t in range(2)]
            return X(0) + W(0) + W(1) + X(1) + W(2) + W(3)
        def extra_reads(st):
            def X(tt):
                d = frag(st, tt); return [f'ds_read_b128 v[{d}:{d+3}], v9 offset:{L_MF + tt*1024}']
            def W(j):
                d = frag(st, 2 + j); return [f'ds_read_b128 v[{d}:{d+3}], v8 offset:{L_CSF + j*1024}']
            return X(0) + W(0) + W(1) + X(1) + W(2) + W(3)
        e('v_lshlrev_b32 v8, 4, v0')
        e('s_lshl_b32 s60, s30, 11')
        e('v_add_u32 v9, s60, v8')
        order = [(0, 0), (0, 1), (1, 0), (1, 1), (0, 2), (1, 2), (0, 3), (1, 3)]
        needn = [3, 5, 6, 6, 8, 8, 10, 10]
        needx = [2, 3, 4, 4, 5, 5, 6, 6]
        def mfma(st, tt, j):
            a = ACC + (tt * 4 + j) * 16
            A = frag(st, 2 + j); B = frag(st, tt)
            return f'v_mfma_f32_32x32x16_bf16 v[{a}:{a+15}], v[{A}:{A+3}], v[{B}:{B+3}], v[{a}:{a+15}]'
        self.stamp(1)
        e('s_barrier')
        self.stamp(2)
        for r in reads(0, 0, 0): e(r)
        steps = [(ls, ks) for ls in range(8) for ks in range(4)] + [(8, 0)]
        for si, (ls, ks) in enumerate(steps):
            st = si & 1
            cur_n = 6 if ls == 8 else 10
            nd = needx if ls == 8 else needn
            if si + 1 < len(steps):
                nls, nks = steps[si + 1]
                nxt = extra_reads(st ^ 1) if nls == 8 else reads(nls, nks, st ^ 1)
            else:
                nxt = []
            boundary = (ks == 3)
            issued = 0
            done_cur = 0
            if boundary: plan = [0, 0, 2, 2, 2, 2, 2, 0]
            else: plan = [2, 2, 2, 2, 1, 1, 0, 0]
            for mi, (tt, j) in enumerate(order):
                if nd[mi] > done_cur:
                    e(f's_waitcnt lgkmcnt({cur_n - nd[mi] + issued})')
                    done_cur = nd[mi]
                if 'nomfma' not in self.opt: e(mfma(st, tt, j))
                if boundary and mi == 1:
                    e('s_waitcnt lgkmcnt(0)')
                    done_cur = cur_n
                    e('s_barrier')
                for _ in range(plan[mi]):
                    if issued < len(nxt):
                        if not ('noreads' in self.opt or ('notr' in self.opt and '_tr_' in nxt[issued]) or ('nob128' in self.opt and 'b128' in nxt[issued])): e(nxt[issued])
                        issued += 1
            assert issued == len(nxt)
        self.stamp(3)
        e('v_lshlrev_b32 v10, 2, v1')
        e('s_lshl_b32 s60, s30, 8')
        e('v_add_u32 v10, s60, v10')
        e(f'ds_read_b32 v32, v10 offset:{L_RS}')
        e(f'ds_read_b32 v33, v10 offset:{L_RS+128}')
        e('v_mov_b32 v11, 0')
        e(f'ds_read_b32 v34, v11 offset:{L_NONCE}')
        self.conv_loads()
        e('s_waitcnt lgkmcnt(0)')
        e('v_readfirstlane_b32 s70, v34')
        e(f's_xor_b32 s71, s70, {TAGX}')
        for tt in range(2):
            b = 36 + 6 * tt
            e(f'v_rcp_f32 v35, v{32+tt}')
            e(f'v_mul_f32 v{b+4}, v{32+tt}, v{32+tt}')
            e(f'v_mul_f32 v{b}, {f2u(K1C):#x}, v35')
            e(f'v_mul_f32 v{b+2}, v35, v35')
            e(f'v_mul_f32 v{b+2}, v{b+2}, v35')
            e(f'v_mul_f32 v{b+2}, {f2u(K2C):#x}, v{b+2}')
            e(f'v_mov_b32 v{b+1}, v{b}')
            e(f'v_mov_b32 v{b+5}, v{b+4}')
            e(f'v_mov_b32 v{b+3}, v{b+2}')
        e('s_lshl_b32 s60, s34, 3\ns_lshl_b32 s61, s30, 1\ns_add_u32 s60, s60, s61')
        e('s_mul_i32 s60, s60, 112\ns_lshl_b32 s61, s35, 2\ns_add_u32 s60, s60, s61\ns_lshl_b32 s60, s60, 10')
        e(f's_add_u32 s60, s60, {WS_HS}')
        e(f's_add_u32 s61, s60, {112*1024}')
        T = 48
        for tt in range(2):
            b = 36 + 6 * tt
            for j in range(4):
                a = ACC + (tt * 4 + j) * 16
                T = 48 + ((tt * 4 + j) & 1) * 12
                P = [0, 2, 8, 10]
                pr = lambda x: f'v[{x}:{x+1}]'
                for i, p in enumerate(P): e(f'v_pk_mul_f32 {pr(T+2*i)}, {pr(a+p)}, {pr(a+p)}')
                for i, p in enumerate(P): e(f'v_pk_fma_f32 {pr(T+2*i)}, {pr(T+2*i)}, {pr(b+2)}, {pr(b)}')
                for i, p in enumerate(P): e(f'v_pk_mul_f32 {pr(T+2*i)}, {pr(T+2*i)}, {pr(a+p)}')
                for i in range(8): e(f'v_exp_f32 v{T+i}, v{T+i}')
                for i, p in enumerate(P): e(f'v_pk_mul_f32 {pr(a+p)}, {pr(a+p)}, {pr(a+p+4)}')
                for i, p in enumerate(P): e(f'v_pk_fma_f32 {pr(T+2*i)}, {pr(T+2*i)}, {pr(b+4)}, {pr(b+4)}')
                for i in range(8): e(f'v_rcp_f32 v{T+i}, v{T+i}')
                for i, p in enumerate(P): e(f'v_pk_mul_f32 {pr(a+p)}, {pr(a+p)}, {pr(T+2*i)}')
                for i, p in enumerate(P): e(f'v_cvt_pk_bf16_f32 v{T+8+i}, v{a+p}, v{a+p+1}')
                e(f'buffer_store_dwordx4 v[{T+8}:{T+11}], v8, s[40:43], s{60+tt} offen offset:{j*1024} sc1')
        self.stamp(4)
        e('s_lshl_b32 s60, s34, 2\ns_add_u32 s60, s60, s30\ns_lshl_b32 s60, s60, 2\ns_and_b32 s61, s31, 3\ns_add_u32 s60, s60, s61')
        e(f's_lshl_b32 s60, s60, 7\ns_lshl_b32 s61, s38, 3\ns_add_u32 s60, s60, s61\ns_add_u32 s60, s60, {WS_FH}')
        e('s_waitcnt vmcnt(0)')
        self.store_flag('s60', 4)
        self.stamp(5)
        e('s_branch L_CONV')

    def conv_loads(self):
        e = self.e
        self.srd(48, 12, 2097152)
        self.srd(52, 14, 1024)
        e('s_lshr_b32 s62, s30, 1')
        e('s_and_b32 s63, s30, 1')
        e('s_lshl_b32 s64, s2, 1\ns_add_u32 s64, s64, s62')
        e(f's_mul_i32 s65, s62, {CH_SZ}\ns_add_u32 s65, s65, {IMG}')
        e('s_lshl_b32 s60, s64, 12\ns_lshl_b32 s61, s63, 1\ns_add_u32 s60, s60, s61')
        e(f's_mul_i32 s61, s63, {HO_OFF}\ns_add_u32 s61, s61, s65\ns_add_u32 s66, s61, 32')
        e('s_mov_b32 m0, s66')
        for i in range(4):
            e(f'buffer_load_dwordx4 v8, s[48:51], s60 offen offset:{i*1024} lds')
        e('v_mov_b32 v12, 0')
        e('s_lshl_b32 s67, s64, 12')
        e('buffer_load_ushort v13, v12, s[48:51], s67 offen')
        e('s_lshl_b32 s67, s64, 1')
        e('buffer_load_ushort v14, v12, s[52:55], s67 offen')
        e(f's_lshl_b32 s60, s64, 12\ns_lshl_b32 s67, s63, 11\ns_add_u32 s60, s60, s67\ns_add_u32 s60, s60, {WS_KVT}')
        e(f's_add_u32 s67, s67, s65\ns_add_u32 s67, s67, {KV_OFF}')
        e('s_mov_b32 m0, s67')
        for i in range(2):
            e(f'buffer_load_dwordx4 v8, s[40:43], s60 offen offset:{i*1024} sc1 lds')
        e('s_mov_b32 s73, s61\ns_mov_b32 s74, s65')

    def conv(self):
        e = self.e
        e('L_CONV:')
        e('; ---- conv ----')
        e('s_and_b32 s63, s30, 1')
        e('v_lshlrev_b32 v15, 16, v13')
        e('v_cmp_eq_u32 vcc, 7, v0')
        e('s_cmp_eq_u32 s63, 1')
        e('s_cselect_b64 vcc, vcc, 0')
        e('v_mov_b32 v12, 0')
        e('v_cndmask_b32 v15, v12, v15, vcc')
        e('v_lshlrev_b32 v16, 2, v0')
        e('v_add_u32 v16, s73, v16')
        e('s_mov_b64 exec, 0xff')
        e('ds_write_b32 v16, v15')
        e('s_mov_b64 exec, -1')
        e('v_lshlrev_b32 v16, 2, v0')
        e('s_lshl_b32 s60, s63, 8')
        e(f's_add_u32 s60, s60, {KV_OFF+4096}')
        e('s_add_u32 s60, s60, s74')
        e('v_add_u32 v16, s60, v16')
        e('ds_write_b32 v16, v12')
        e(f'ds_write_b32 v12, v12 offset:{L_CNT}')
        ACC = 32; AF = [64, 96]; BF = [128, 160]
        e('v_and_b32 v1, 15, v0')
        e('v_lshrrev_b32 v2, 4, v0')
        e('v_add_u32 v3, 1, v1')
        e('v_lshrrev_b32 v3, 1, v3')
        e('v_lshl_add_u32 v3, v2, 2, v3')
        e('v_lshlrev_b32 v3, 2, v3')
        e('v_and_b32 v4, 1, v1')
        e('v_xor_b32 v4, 1, v4')
        e(f'v_mul_u32_u24 v4, {HO_OFF}, v4')
        e('v_add_u32 v3, v3, v4')
        e('s_lshl_b32 s60, s63, 8')
        e('s_add_u32 s60, s60, s74')
        e('v_add_u32 v20, s60, v3')
        for i in range(1, 4): e(f'v_add_u32 v{20+i}, {i*1024}, v20')
        e('v_lshlrev_b32 v3, 5, v1')
        e('v_lshlrev_b32 v4, 4, v2')
        e('v_sub_u32 v3, v4, v3')
        e(f's_add_u32 s60, s60, {KV_OFF+480}')
        e('v_add_u32 v24, s60, v3')
        e('v_lshlrev_b32 v3, 3, v2')
        e('v_add_u32 v3, v3, v1')
        e('v_sub_u32 v3, 15, v3')
        e('v_and_b32 v4, 1, v3')
        e('v_lshlrev_b32 v4, 4, v4')
        e('v_lshlrev_b32 v4, v4, v14')
        e('v_ashrrev_i32 v3, 1, v3')
        for d in range(4):
            e(f'v_cmp_eq_u32 vcc, {d}, v3')
            e(f'v_cndmask_b32 v{26+d}, v12, v4, vcc')
        for i in range(32): e(f'v_mov_b32 v{ACC+i}, 0')
        e('s_waitcnt lgkmcnt(0)')
        e('s_barrier')
        self.stamp(6)
        def rd(p, st):
            out = []
            for a in range(8):
                d = AF[st] + 4 * a
                o = (a & 1) * 128 + p * 16
                out.append(f'ds_read2_b32 v[{d}:{d+1}], v{20 + (a >> 1)} offset0:{o} offset1:{o+1}')
                out.append(f'ds_read2_b32 v[{d+2}:{d+3}], v{20 + (a >> 1)} offset0:{o+2} offset1:{o+3}')
                d = BF[st] + 4 * a
                out.append(f'ds_read_b128 v[{d}:{d+3}], v24 offset:{(7-a)*512 + p*64}')
            return out
        for r in rd(0, 0): e(r)
        for p in range(4):
            st = p & 1
            nxt = rd(p + 1, st ^ 1) if p < 3 else []
            e('s_waitcnt lgkmcnt(0)')
            k = 0
            for a in range(8):
                for b in range(8 - a):
                    g = a + b
                    e(f'v_mfma_f32_16x16x32_bf16 v[{ACC+4*g}:{ACC+4*g+3}], v[{AF[st]+4*a}:{AF[st]+4*a+3}], v[{BF[st]+4*b}:{BF[st]+4*b+3}], v[{ACC+4*g}:{ACC+4*g+3}]')
                    if k < len(nxt):
                        e(nxt[k]); k += 1
            if p == 0:
                e('s_cmp_lg_u32 s63, 0')
                e('s_cbranch_scc1 L_NOD')
                for b in range(8):
                    e(f'v_mfma_f32_16x16x32_bf16 v[{ACC+4*b}:{ACC+4*b+3}], v[26:29], v[{BF[st]+4*b}:{BF[st]+4*b+3}], v[{ACC+4*b}:{ACC+4*b+3}]')
                e('L_NOD:')
        self.stamp(7)
        e('v_lshlrev_b32 v8, 4, v0')
        e(f's_and_b32 s60, s30, 1\ns_lshl_b32 s60, s60, 13\ns_lshr_b32 s61, s30, 1\ns_mul_i32 s61, s61, 49152\ns_add_u32 s60, s60, s61')
        e('v_add_u32 v9, s60, v8')
        for g in range(8):
            e(f'ds_write_b128 v9, v[{ACC+4*g}:{ACC+4*g+3}] offset:{g*1024}')
        e('s_waitcnt lgkmcnt(0)')
        e('v_mov_b32 v10, 1')
        e('s_mov_b64 exec, 1')
        e(f'ds_add_u32 v12, v10 offset:{L_CNT}')
        e('s_mov_b64 exec, -1')
        e('v_lshrrev_b32 v16, 3, v0')
        e('s_lshl_b32 s60, s30, 3')
        e('v_add_u32 v16, s60, v16')
        e('v_and_b32 v17, 7, v0')
        e('v_lshlrev_b32 v18, 10, v16')
        e('v_lshl_add_u32 v18, v17, 4, v18')
        e('s_lshl_b32 s75, s37, 16\ns_lshl_b32 s60, s38, 7\ns_add_u32 s75, s75, s60')
        e('s_add_u32 s76, s75, 32768')
        e('buffer_load_dwordx4 v[64:67], v18, s[44:47], s75 offen')
        e('buffer_load_dwordx4 v[68:71], v18, s[44:47], s76 offen')
        e('v_lshlrev_b32 v19, 3, v16')
        e(f's_lshl_b32 s60, s37, 9\ns_add_u32 s60, s60, {WS_STATS}')
        e('buffer_load_dword v72, v19, s[40:43], s60 offen sc1')
        e('buffer_load_dword v73, v19, s[40:43], s60 offen offset:256 sc1')
        L = e.newlabel('SB')
        e(f's_mov_b32 s72, {POLL_LIMIT}')
        e(f'{L}:')
        e(f'ds_read_b32 v10, v12 offset:{L_CNT}')
        e('s_sub_u32 s72, s72, 1')
        e('s_waitcnt lgkmcnt(0)')
        e('v_readfirstlane_b32 s60, v10')
        e('s_cmp_eq_u32 s72, 0')
        e(f's_cbranch_scc1 {L}_D')
        e('s_cmp_lt_u32 s60, 4')
        e(f's_cbranch_scc1 {L}')
        e(f'{L}_D:')
        e('s_lshl_b32 s60, s30, 11')
        e('v_add_u32 v9, s60, v8')
        for gg in range(2):
            for src in range(4):
                d = 96 + (gg * 4 + src) * 4
                e(f'ds_read_b128 v[{d}:{d+3}], v9 offset:{XBLK[src] + gg*1024}')
        e('v_lshrrev_b32 v3, 2, v1')
        e('v_lshlrev_b32 v3, 16, v3')
        e('v_and_b32 v4, 3, v1')
        e('v_lshl_add_u32 v3, v4, 6, v3')
        e('v_lshl_add_u32 v3, v2, 4, v3')
        e(f's_lshl_b32 s60, s30, 19\ns_lshl_b32 s61, s2, 8\ns_add_u32 s60, s60, s61\ns_add_u32 s60, s60, {WS_YS}')
        e('s_add_u32 s61, s60, 0x40000')
        e('s_waitcnt lgkmcnt(0)')
        for gg in range(2):
            d = 96 + gg * 16
            for r in range(4):
                e(f'v_add_f32 v{d+r}, v{d+r}, v{d+4+r}')
                e(f'v_add_f32 v{d+8+r}, v{d+8+r}, v{d+12+r}')
            for r in range(4):
                e(f'v_cvt_pk_bf16_f32 v{d+4+r}, v{d+r}, v{d+8+r}')
            e(f'buffer_store_dwordx4 v[{d+4}:{d+7}], v3, s[40:43], s{60+gg} offen sc1')
        e(f's_lshl_b32 s60, s30, 11\ns_lshl_b32 s61, s2, 3\ns_add_u32 s60, s60, s61\ns_add_u32 s60, s60, {WS_FY}')
        e('s_waitcnt vmcnt(0)')
        self.store_flag('s60', 4)
        self.stamp(8)
        e('v_and_b32 v4, 31, v0\nv_lshlrev_b32 v4, 3, v4')
        e(f's_lshr_b32 s60, s37, 3\ns_lshl_b32 s60, s60, 11\ns_lshl_b32 s61, s38, 8\ns_add_u32 s60, s60, s61\ns_add_u32 s60, s60, {WS_FY}')
        self.poll64(4, 's60', 6, sleep=4)
        self.stamp(9)
        e('v_lshlrev_b32 v4, 10, v17')
        e('v_lshl_add_u32 v4, v16, 2, v4')
        e(f's_lshl_b32 s60, s37, 16\ns_lshl_b32 s61, s38, 13\ns_add_u32 s60, s60, s61\ns_add_u32 s60, s60, {WS_YS}')
        for ee in range(2):
            for q in range(4):
                e(f'buffer_load_dword v{76+ee*4+q}, v4, s[40:43], s60 offen offset:{q*256+ee*128} sc1')
        for ee in range(2):
            e(f'v_lshlrev_b32 v74, 16, v{72+ee}')
            e(f'v_and_b32 v75, 0xffff0000, v{72+ee}')
            e('v_rcp_f32 v75, v75')
            for q in range(4):
                x = 64 + ee * 4 + q
                d = 96 + ee * 16 + 2 * q
                e(f'v_lshlrev_b32 v{d}, 16, v{x}')
                e(f'v_and_b32 v{d+1}, 0xffff0000, v{x}')
                e(f'v_sub_f32 v{d+8}, v{d}, v74')
                e(f'v_sub_f32 v{d+9}, v{d+1}, v74')
                e(f'v_mul_f32 v{d+8}, v{d+8}, v75')
                e(f'v_mul_f32 v{d+9}, v{d+9}, v75')
        e('s_waitcnt vmcnt(0)')
        for ee in range(2):
            for q in range(4):
                y = 76 + ee * 4 + q
                d = 96 + ee * 16 + 2 * q
                e(f'v_lshlrev_b32 v74, 16, v{y}')
                e(f'v_and_b32 v75, 0xffff0000, v{y}')
                e(f'v_fmac_f32 v{d}, v{d+8}, v74')
                e(f'v_fmac_f32 v{d+1}, v{d+9}, v75')
        e('v_and_b32 v4, 7, v16')
        e('v_lshlrev_b32 v5, 1, v17')
        e('v_xor_b32 v4, v4, v5')
        e('v_lshlrev_b32 v4, 4, v4')
        e('v_lshl_add_u32 v4, v16, 8, v4')
        e(f'v_add_u32 v4, {65536}, v4')
        e('v_xor_b32 v5, 16, v4')
        e('v_add_u32 v6, 49152, v4')
        e('v_add_u32 v7, 49152, v5')
        self.srd(48, 24, 2097152)
        self.stamp(10)
        e('s_barrier')
        self.stamp(11)
        for ee in range(2):
            for kq in range(4):
                for h in range(2):
                    d = 128 + ((ee * 4 + kq) * 2 + h) * 4
                    e(f'ds_read_b128 v[{d}:{d+3}], v{4+h+2*ee} offset:{kq*12288}')
        for ee in range(2):
            e(f's_waitcnt lgkmcnt({8 - 8*ee})')
            dd = 96 + ee * 16
            for kq in range(4):
                d = 128 + (ee * 4 + kq) * 8
                for i in range(0, 8, 2):
                    e(f'v_pk_add_f32 v[{dd+i}:{dd+i+1}], v[{dd+i}:{dd+i+1}], v[{d+i}:{d+i+1}]')
            for q in range(4):
                e(f'v_cvt_pk_bf16_f32 v{dd+8+q}, v{dd+2*q}, v{dd+2*q+1}')
            e(f'buffer_store_dwordx4 v[{dd+8}:{dd+11}], v18, s[48:51], s{75+ee} offen')
        self.dump_stamps()
        e('s_endpgm')

    def poff(self, kq):
        return kq * 16384

    def wd_setup(self):
        e = self.e
        self.srd(52, 22, 1835008)
        e('s_sub_u32 s77, s30, 4')
        e('v_lshrrev_b32 v1, 3, v0')
        e('v_bfe_u32 v2, v0, 4, 1')
        e('v_lshlrev_b32 v2, 2, v2')
        e('v_and_b32 v3, 7, v0')
        e('v_xor_b32 v2, v2, v3')
        e('v_lshlrev_b32 v2, 4, v2')
        e('v_lshl_add_u32 v10, v1, 10, v2')
        e('s_mul_i32 s78, s77, 458752\ns_lshl_b32 s60, s38, 7\ns_add_u32 s78, s78, s60')
        e('s_mul_i32 s79, s77, 12288')
        e('v_bfe_u32 v1, v0, 2, 2')
        e('v_lshrrev_b32 v2, 5, v0')
        e('v_lshl_add_u32 v2, v2, 3, v1')
        e('v_bfe_u32 v3, v0, 4, 1')
        e('v_bfe_u32 v4, v0, 1, 1')
        e('v_lshl_add_u32 v3, v3, 1, v4')
        e('v_lshrrev_b32 v1, 1, v1')
        e('v_lshlrev_b32 v1, 2, v1')
        e('v_xor_b32 v3, v3, v1')
        e('v_lshlrev_b32 v3, 4, v3')
        e('v_and_b32 v4, 1, v0')
        e('v_lshl_add_u32 v3, v4, 3, v3')
        e('v_lshl_add_u32 v3, v2, 7, v3')
        e(f's_add_u32 s60, s79, {65536}')
        e('v_add_u32 v11, s60, v3')
        e('v_xor_b32 v12, 64, v11')

    def wd_dma(self, vm, ks, region, pos):
        e = self.e
        base = 114688 if region == 'A' else 65536
        e(f's_add_u32 s60, s78, {ks*16384}')
        e(f's_add_u32 m0, s79, {base + pos*2048}')
        e('buffer_load_dwordx4 v10, s[52:55], s60 offen lds')
        e(f's_add_u32 s60, s78, {ks*16384 + 8192}')
        e(f's_add_u32 m0, s79, {base + pos*2048 + 1024}')
        e('buffer_load_dwordx4 v10, s[52:55], s60 offen lds')
        return vm.issue(2)

    def wd_read(self, dst, region, pos):
        off = (49152 if region == 'A' else 0) + pos * 2048
        return [f'ds_read_b64_tr_b16 v[{dst+4*ct+2*t}:{dst+4*ct+2*t+1}], v{11+ct} offset:{off + t*512}' for ct in range(2) for t in range(2)]

    WD0 = 80
    def wd_tail(self, vm, tokA, tokB):
        e = self.e
        W = self.WD0
        vm.wait(e, tokA)
        for i in range(6):
            for r in self.wd_read(W + 8 * i, 'A', i): e(r)
            if i % 2: e('s_waitcnt lgkmcnt(4)')
        e('s_waitcnt lgkmcnt(0)')
        tokC = None
        for i in range(6):
            t = self.wd_dma(vm, 12 + i, 'A', i)
            if i == 3: tokC = t
        vm.wait(e, tokB)
        for i in range(6):
            for r in self.wd_read(W + 8 * (6 + i), 'B', i): e(r)
            if i % 2: e('s_waitcnt lgkmcnt(4)')
        e('s_waitcnt lgkmcnt(0)')
        for i in range(6): self.wd_dma(vm, 18 + i, 'B', i)
        vm.wait(e, tokC)
        for i in range(4):
            for r in self.wd_read(W + 8 * (12 + i), 'A', i): e(r)
            if i % 2: e('s_waitcnt lgkmcnt(4)')
        e('s_waitcnt lgkmcnt(0)')
        for i in range(4): self.wd_dma(vm, 24 + i, 'A', i)

    def g1_helper(self):
        e = self.e
        vm = VM()
        e('L_HELP:')
        e('s_sub_u32 s77, s30, 4')
        e('s_and_b32 s62, s77, 1')
        e('s_lshr_b32 s63, s77, 1')
        e('s_cmp_eq_u32 s62, 0')
        e('s_cselect_b32 s48, s18, s20\ns_cselect_b32 s49, s19, s21')
        e('s_mov_b32 s50, 1835008\ns_mov_b32 s51, 0x20000')
        e('v_lshrrev_b32 v1, 3, v0')
        e('v_lshrrev_b32 v2, 4, v0')
        e('v_and_b32 v3, 7, v0')
        e('s_lshl_b32 s60, s62, 2')
        e('v_add_u32 v4, s60, v2')
        e('v_xor_b32 v4, v4, v3')
        e('v_lshlrev_b32 v4, 4, v4')
        e('v_lshl_add_u32 v13, v1, 10, v4')
        e('v_and_b32 v2, 1, v2')
        e('v_lshlrev_b32 v2, 1, v2')
        e('v_add_u32 v2, s60, v2')
        e('v_xor_b32 v2, v2, v3')
        e('v_lshlrev_b32 v2, 4, v2')
        e('v_mul_u32_u24 v1, 3584, v1')
        e('v_add_u32 v14, v1, v2')
        e('s_lshl_b32 s64, s34, 18\ns_lshl_b32 s60, s77, 13\ns_add_u32 s64, s64, s60')
        e('s_mul_i32 s65, s63, 28672\ns_lshl_b32 s60, s35, 7\ns_add_u32 s65, s65, s60')
        e('s_lshl_b32 s66, s77, 10')
        e('s_lshl_b32 s67, s62, 13\ns_lshl_b32 s60, s63, 10\ns_add_u32 s67, s67, s60\ns_add_u32 s67, s67, 32768')
        def stage(ls):
            if 'nodma' in self.opt and ls >= 1: return vm.n
            sl = SLOT[ls % 3]
            e(f's_add_u32 s60, s36, {ls}\ns_and_b32 s60, s60, 7')
            e('s_lshl_b32 s68, s60, 7\ns_add_u32 s68, s68, s64')
            e('s_mul_i32 s69, s60, 229376\ns_add_u32 s69, s69, s65')
            for j in range(4):
                e(f's_add_u32 m0, s67, {sl + j*2048}')
                e('buffer_load_dwordx4 v14, s[48:51], s69 offen lds')
                if j < 3: e('s_add_u32 s69, s69, 57344')
                for jj in (2 * j, 2 * j + 1):
                    e(f's_add_u32 m0, s66, {sl + jj*4096}')
                    e('buffer_load_dwordx4 v13, s[44:47], s68 offen lds')
                    if jj < 7: e('s_add_u32 s68, s68, 32768')
            return vm.issue(12)
        tok = {}
        tok[0] = stage(0)
        self.srd(56, 26, 256)
        e('s_cmp_lg_u32 s2, 0\ns_cbranch_scc1 L_NOPROD\ns_cmp_lg_u32 s30, 7\ns_cbranch_scc1 L_NOPROD')
        e('v_mov_b32 v1, 0')
        e('buffer_load_dword v2, v1, s[40:43], 0 offen sc1')
        e('s_waitcnt vmcnt(0)')
        e('v_add_u32 v2, 1, v2\nv_mov_b32 v3, 1')
        e('s_mov_b64 exec, 1')
        e('buffer_store_dwordx2 v[2:3], v1, s[56:59], 0 offen sc1')
        e('buffer_store_dword v2, v1, s[40:43], 0 offen sc1')
        e('s_mov_b64 exec, -1')
        e('s_waitcnt vmcnt(0)')
        e('L_NOPROD:')
        tok[1] = stage(1)
        e('v_lshrrev_b32 v2, 5, v0')
        e('v_bfe_u32 v3, v0, 2, 2')
        e('v_bfe_u32 v4, v0, 1, 1')
        e('v_and_b32 v5, 1, v0')
        e('v_bfe_u32 v6, v0, 4, 1')
        e('v_lshrrev_b32 v7, 1, v3')
        e('v_lshlrev_b32 v7, 1, v7')
        e('v_lshl_add_u32 v7, v4, 2, v7')
        e('v_xor_b32 v7, v7, v5')
        e('v_lshlrev_b32 v7, 4, v7')
        e('v_lshl_add_u32 v7, v6, 3, v7')
        e('v_lshl_add_u32 v3, v2, 3, v3')
        e('v_lshl_add_u32 v7, v3, 7, v7')
        e('v_lshl_add_u32 v7, v4, 13, v7')
        e('s_lshl_b32 s60, s77, 5')
        e('v_xor_b32 v7, s60, v7')
        e('v_add_u32 v15, 32768, v7')
        for i in range(4): e(f'v_mov_b32 v{48+i}, 0x3f803f80')
        self.wd_setup()
        tokA = tokB = None
        for ls in range(9):
            if ls < 8: vm.wait(e, tok[ls])
            if ls == 8: e('s_waitcnt lgkmcnt(0)')
            e('s_barrier')
            if ls in (0, 2, 4, 6): self.stamp(1 + ls // 2)
            if ls == 7: self.stamp(11)
            if ls == 8: self.stamp(13)
            if ls == 2:
                e('v_mov_b32 v9, 0')
                e('buffer_load_dwordx2 v[54:55], v9, s[56:59], 0 offen sc1'); tokN = vm.issue()
            if 0 <= ls <= 5: tok[ls + 2] = stage(ls + 2)
            if ls < 4:
                L = e.newlabel('NOCS')
                e(f's_cmp_lg_u32 s39, {ls}\ns_cbranch_scc1 {L}')
                e(f'v_add_u32 v9, {SLOT[ls % 3]}, v15')
                for ks in range(4):
                    for t in range(2):
                        e(f'ds_read_b64_tr_b16 v[{32+4*ks+2*t}:{33+4*ks+2*t}], v9 offset:{(16*ks+4*t)*128}')
                e('s_waitcnt lgkmcnt(0)')
                e('v_mfma_f32_32x32x16_bf16 v[16:31], v[48:51], v[32:35], 0')
                for ks in range(1, 4):
                    e(f'v_mfma_f32_32x32x16_bf16 v[16:31], v[48:51], v[{32+4*ks}:{35+4*ks}], v[16:31]')
                e('v_mov_b32 v52, v16')
                e(f'{L}:')
            if ls == 4:
                e('v_readfirstlane_b32 s70, v54\nv_readfirstlane_b32 s71, v55')
                e('s_cmp_lg_u32 s71, 0\ns_cbranch_scc1 L_HAVEN')
                self.get_nonce_blocking(54)
                e('L_HAVEN:')
                e(f's_xor_b32 s71, s70, {TAGX}')
                e('s_add_u32 s60, s36, s39\ns_and_b32 s60, s60, 7\ns_lshl_b32 s61, s35, 3\ns_add_u32 s60, s60, s61')
                e(f's_lshl_b32 s60, s60, 10\ns_lshl_b32 s61, s77, 8\ns_add_u32 s60, s60, s61\ns_add_u32 s60, s60, {WS_CS}')
                e('v_mov_b32 v53, s70')
                e('v_lshlrev_b32 v9, 3, v0')
                e('s_mov_b32 exec_hi, 0')
                e('buffer_store_dwordx2 v[52:53], v9, s[40:43], s60 offen sc1')
                e('s_mov_b64 exec, -1')
            if ls == 6:
                self.gran_loads(vm)
                tokG = vm.n
                for i in range(6): tokA = self.wd_dma(vm, i, 'A', i)
            if ls == 7:
                for i in range(6): tokB = self.wd_dma(vm, 6 + i, 'B', i)
                vm.wait(e, tokG)
                self.stamp(12)
                self.gran_check_build()
        self.wd_tail(vm, tokA, tokB)
        e('s_branch L_G2')

    def gran_issue(self):
        e = self.e
        e(f's_lshl_b32 s60, s34, 11\ns_lshl_b32 s61, s77, 9\ns_add_u32 s60, s60, s61\ns_add_u32 s60, s60, {WS_STATS}')
        e('v_lshlrev_b32 v9, 3, v0')
        e('buffer_load_dwordx2 v[16:17], v9, s[40:43], s60 offen sc1')
        e('v_and_b32 v8, 31, v0\nv_lshlrev_b32 v8, 3, v8\nv_lshrrev_b32 v7, 5, v0\nv_lshl_add_u32 v7, v7, 10, v8')
        e(f's_lshl_b32 s60, s35, 13\ns_lshl_b32 s61, s77, 8\ns_add_u32 s60, s60, s61\ns_add_u32 s60, s60, {WS_CS}')
        e('s_add_u32 s61, s60, 4096')
        e('buffer_load_dwordx2 v[18:19], v7, s[40:43], s60 offen sc1')
        e('buffer_load_dwordx2 v[20:21], v7, s[40:43], s60 offen offset:2048 sc1')
        e('buffer_load_dwordx2 v[22:23], v7, s[40:43], s61 offen sc1')
        e('buffer_load_dwordx2 v[24:25], v7, s[40:43], s61 offen offset:2048 sc1')
        e(f's_mov_b32 s60, {WS_FKV}')
        e('buffer_load_dwordx2 v[26:27], v8, s[40:43], s60 offen sc1')

    def gran_loads(self, vm):
        self.gran_issue(); vm.issue(6)

    def gran_check_build(self):
        e = self.e
        L = e.newlabel('GR'); D = e.newlabel('GRD')
        e(f's_mov_b32 s72, {POLL_LIMIT}')
        e(f'{L}:')
        e('v_cmp_ne_u32 vcc, s70, v17')
        for r in (19, 21, 23, 25):
            e(f'v_cmp_ne_u32 s[60:61], s70, v{r}')
            e('s_or_b64 vcc, vcc, s[60:61]')
        e('v_cmp_ne_u64 s[60:61], s[70:71], v[26:27]')
        e('s_or_b64 vcc, vcc, s[60:61]')
        e(f's_cbranch_scc0 {D}')
        e('s_sleep 2')
        self.gran_issue()
        e('s_waitcnt vmcnt(0)')
        e('s_sub_u32 s72, s72, 1\ns_cmp_lg_u32 s72, 0')
        e(f's_cbranch_scc1 {L}')
        e(f'{D}:')
        e('v_add_f32 v18, v18, v20\nv_add_f32 v22, v22, v24\nv_add_f32 v18, v18, v22')
        e('v_mov_b32 v19, v18')
        e('v_permlane32_swap_b32 v18, v19')
        e('v_add_f32 v18, v18, v19')
        e('v_cvt_pk_bf16_f32 v19, v18, v18')
        e('v_lshlrev_b32 v20, 16, v19')
        e('v_sub_f32 v20, v18, v20')
        e('v_cvt_pk_bf16_f32 v28, v18, v20')
        e('v_mov_b32 v29, 0\nv_mov_b32 v30, 0\nv_mov_b32 v31, 0')
        e('v_cmp_gt_u32 vcc, 32, v0')
        e('v_cndmask_b32 v28, v29, v28, vcc')
        e('v_lshlrev_b32 v7, 4, v0')
        e('s_lshl_b32 s60, s77, 10')
        e('v_add_u32 v8, s60, v7')
        e(f'ds_write_b128 v8, v[28:31] offset:{L_CSF}')
        e('v_and_b32 v20, 0xffff, v16')
        e('v_xor_b32 v20, 0x8000, v20')
        e('v_lshl_or_b32 v32, v20, 16, v20')
        e('v_mov_b32 v33, 0\nv_mov_b32 v34, 0\nv_mov_b32 v35, 0\nv_mov_b32 v36, 0')
        e('v_and_b32 v8, 31, v0\nv_lshlrev_b32 v8, 4, v8\nv_lshrrev_b32 v7, 5, v0\nv_lshl_add_u32 v8, v7, 10, v8')
        e('s_lshl_b32 s60, s77, 11')
        e('v_add_u32 v8, s60, v8')
        e(f'ds_write_b128 v8, v[32:35] offset:{L_MF}')
        e('v_mov_b32 v37, 0')
        e(f'ds_write_b128 v8, v[34:37] offset:{L_MF+512}')
        e('v_and_b32 v20, 0xffff0000, v16')
        e('v_lshlrev_b32 v8, 2, v0\ns_lshl_b32 s60, s77, 8\nv_add_u32 v8, s60, v8')
        e(f'ds_write_b32 v8, v20 offset:{L_RS}')
        e('v_mov_b32 v20, s70')
        e(f'ds_write_b32 v33, v20 offset:{L_NONCE}')

    def g2(self):
        e = self.e
        e('L_G2:')
        e('; ---- GEMM2 ----')
        ACC = 16; W = self.WD0; H = 208; LW = 240
        for i in range(64): e(f'v_mov_b32 v{ACC+i}, 0')
        self.stamp(5)
        e('s_barrier')
        self.stamp(6)
        e('v_min_u32 v4, 6, v0\nv_lshlrev_b32 v4, 3, v4')
        e(f's_lshl_b32 s61, s37, 2\ns_add_u32 s61, s61, s77\ns_lshl_b32 s61, s61, 7\ns_add_u32 s61, s61, {WS_FH}')
        e(f's_mul_i32 s62, s37, 224\ns_mul_i32 s63, s77, 28\ns_add_u32 s62, s62, s63\ns_lshl_b32 s62, s62, 10\ns_add_u32 s62, s62, {WS_HS}')
        e(f's_add_u32 s63, s62, {112*1024}')
        e('v_lshlrev_b32 v8, 4, v0')
        self.poll64(4, 's61', 6, sleep=1)
        self.stamp(7)
        vm = VM()
        def hload(ks):
            s = ks % 4
            if ks and ks % 4 == 0:
                e('s_add_u32 s62, s62, 4096\ns_add_u32 s63, s63, 4096')
            for tt in range(2):
                d = H + s * 8 + tt * 4
                e(f'buffer_load_dwordx4 v[{d}:{d+3}], v8, s[40:43], s{62+tt} offen offset:{(ks%4)*1024} sc1')
            return vm.issue(2)
        tok = {}
        for ks in range(4): tok[ks] = hload(ks)
        def res(ks):
            if ks < 18: return ('A', ks - 12)
            if ks < 24: return ('B', ks - 18)
            return ('A', ks - 24)
        for ks in range(28):
            if 16 <= ks + 1 < 28:
                rg, pos = res(ks + 1)
                pre = self.wd_read(LW + 8 * ((ks + 1) & 1), rg, pos)
            else: pre = []
            vm.wait(e, tok[ks])
            if ks >= 16: e('s_waitcnt lgkmcnt(0)')
            wd = W + 8 * ks if ks < 16 else LW + 8 * (ks & 1)
            hh = H + (ks % 4) * 8
            k = 0
            for tt in range(2):
                for ct in range(2):
                    a = ACC + (ct * 2 + tt) * 16
                    e(f'v_mfma_f32_32x32x16_bf16 v[{a}:{a+15}], v[{wd+4*ct}:{wd+4*ct+3}], v[{hh+4*tt}:{hh+4*tt+3}], v[{a}:{a+15}]')
                    if k < len(pre): e(pre[k]); k += 1
            if ks + 4 < 28: tok[ks + 4] = hload(ks + 4)
        self.stamp(8)
        e('v_and_b32 v3, 31, v0\nv_lshrrev_b32 v4, 5, v0\nv_and_b32 v5, 7, v0\nv_xor_b32 v4, v4, v5\nv_lshlrev_b32 v4, 4, v4\nv_lshl_add_u32 v4, v3, 8, v4')
        e(f's_add_u32 s60, s79, 65536')
        e('v_add_u32 v4, s60, v4')
        for q in range(1, 4): e(f'v_xor_b32 v{4+q}, {q*32}, v4')
        for ct in range(2):
            for tt in range(2):
                a = ACC + (ct * 2 + tt) * 16
                for q in range(4):
                    e(f'ds_write_b128 v{4+q}, v[{a+4*q}:{a+4*q+3}] offset:{tt*49152 + ct*128}')
        e('s_waitcnt lgkmcnt(0)')
        self.stamp(10)
        e('s_barrier')
        self.dump_stamps()
        e('s_endpgm')

    def spare(self):
        e = self.e
        e('L_SPARE:')
        self.srd(48, 6, 2097152)
        self.srd(52, 8, 2097152)
        self.srd(56, 10, 4096)
        e('s_sub_u32 s62, s2, 224')
        e('s_lshl_b32 s63, s62, 6\ns_lshl_b32 s60, s30, 3\ns_add_u32 s63, s63, s60')
        e('s_lshl_b32 s64, s63, 10')
        e('s_add_u32 s65, s64, 4096')
        e('v_lshlrev_b32 v8, 4, v0')
        Q = 16; K = 48; V = 92; SH = 124
        for j in range(8):
            e(f'buffer_load_dwordx4 v[{Q+4*j}:{Q+4*j+3}], v8, s[44:47], s{64 + j//4} offen offset:{(j%4)*1024}')
        e('v_lshlrev_b32 v9, 6, v0')
        for j in range(4):
            e(f'buffer_load_dwordx4 v[{SH+4*j}:{SH+4*j+3}], v9, s[56:59], 0 offen offset:{j*16}')
        for j in range(3):
            e(f's_sub_u32 s60, s64, {(3-j)*1024}')
            e(f'v_add_u32 v{10+j}, s60, v8')
            e(f'buffer_load_dwordx4 v[{K+4*j}:{K+4*j+3}], v{10+j}, s[48:51], 0 offen')
        for j in range(8):
            e(f'buffer_load_dwordx4 v[{K+12+4*j}:{K+12+4*j+3}], v8, s[48:51], s{64 + j//4} offen offset:{(j%4)*1024}')
        for j in range(8):
            e(f'buffer_load_dwordx4 v[{V+4*j}:{V+4*j+3}], v8, s[52:55], s{64 + j//4} offen offset:{(j%4)*1024}')
        self.srd(56, 26, 256)
        e('s_waitcnt vmcnt(23)')
        self.stamp(1)
        U = 140; S = 204
        for j in range(8):
            for d in range(4):
                e(f'v_lshlrev_b32 v{U+8*j+2*d}, 16, v{Q+4*j+d}')
                e(f'v_and_b32 v{U+8*j+2*d+1}, 0xffff0000, v{Q+4*j+d}')
        pr = lambda x: f'v[{x}:{x+1}]'
        def allreduce(regs):
            for mod in ('quad_perm:[1,0,3,2]', 'quad_perm:[2,3,0,1]', 'row_half_mirror', 'row_mirror'):
                for r in regs:
                    e(f'v_add_f32_dpp v{r}, v{r}, v{r} {mod} row_mask:0xf bank_mask:0xf')
            for sw in ('v_permlane16_swap_b32', 'v_permlane32_swap_b32'):
                for r in regs: e(f'v_mov_b32 v{r+8}, v{r}')
                for r in regs: e(f'{sw} v{r}, v{r+8}')
                for r in regs: e(f'v_add_f32 v{r}, v{r}, v{r+8}')
        T = 220
        for j in range(8):
            u = U + 8 * j
            e(f'v_pk_add_f32 {pr(T)}, {pr(u)}, {pr(u+2)}')
            e(f'v_pk_add_f32 {pr(T+2)}, {pr(u+4)}, {pr(u+6)}')
            e(f'v_pk_add_f32 {pr(T)}, {pr(T)}, {pr(T+2)}')
            e(f'v_add_f32 v{S+j}, v{T}, v{T+1}')
        allreduce([S + j for j in range(8)])
        M = 224
        for j in range(8): e(f'v_mul_f32 v{M+j}, {f2u(1/512):#x}, v{S+j}')
        for j in range(8):
            u = U + 8 * j
            for i in range(8): e(f'v_sub_f32 v{u+i}, v{u+i}, v{M+j}')
            e(f'v_pk_mul_f32 {pr(T)}, {pr(u)}, {pr(u)}')
            for i in (2, 4, 6): e(f'v_pk_fma_f32 {pr(T)}, {pr(u+i)}, {pr(u+i)}, {pr(T)}')
            e(f'v_add_f32 v{S+j}, v{T}, v{T+1}')
        allreduce([S + j for j in range(8)])
        e('v_and_b32 v1, 7, v0')
        e(f'v_mov_b32 v232, v{M}\nv_mov_b32 v233, v{S}')
        for j in range(1, 8):
            e(f'v_cmp_eq_u32 vcc, {j}, v1')
            e(f'v_cndmask_b32 v232, v232, v{M+j}, vcc')
            e(f'v_cndmask_b32 v233, v233, v{S+j}, vcc')
        e(f'v_mul_f32 v233, {f2u(1/512):#x}, v233')
        e('v_cvt_pk_bf16_f32 v233, v233, v233\nv_lshlrev_b32 v233, 16, v233')
        e(f'v_add_f32 v233, {f2u(1e-5):#x}, v233')
        e('v_cvt_pk_bf16_f32 v233, v233, v233\nv_lshlrev_b32 v233, 16, v233')
        e('v_sqrt_f32 v233, v233')
        e('v_cvt_pk_bf16_f32 v234, v232, v233')
        self.get_nonce_blocking(236)
        e('v_mov_b32 v235, s70')
        e('v_lshlrev_b32 v1, 3, v0')
        e(f's_lshl_b32 s60, s63, 3\ns_add_u32 s60, s60, {WS_STATS}')
        e('s_mov_b64 exec, 0xff')
        e('buffer_store_dwordx2 v[234:235], v1, s[40:43], s60 offen sc1')
        e('s_mov_b64 exec, -1')
        self.stamp(2)
        KU = 140; VU = 162; WU = 178; R = 186; O = 204
        e('s_sub_u32 s60, 7, s30')
        e('v_and_b32 v1, 7, v0\nv_xor_b32 v1, s60, v1\nv_lshlrev_b32 v1, 4, v1\nv_lshl_add_u32 v1, v0, 10, v1')
        for d in range(4):
            for j in range(11):
                e(f'v_lshlrev_b32 v{KU+2*j}, 16, v{K+4*j+d}')
                e(f'v_and_b32 v{KU+2*j+1}, 0xffff0000, v{K+4*j+d}')
            for j in range(8):
                e(f'v_lshlrev_b32 v{VU+2*j}, 16, v{V+4*j+d}')
                e(f'v_and_b32 v{VU+2*j+1}, 0xffff0000, v{V+4*j+d}')
            for cc in range(2):
                s = SH + 4 * d + 2 * cc
                e(f'v_lshlrev_b32 v{WU+0+cc}, 16, v{s}')
                e(f'v_and_b32 v{WU+2+cc}, 0xffff0000, v{s}')
                e(f'v_lshlrev_b32 v{WU+4+cc}, 16, v{s+1}')
                e(f'v_and_b32 v{WU+6+cc}, 0xffff0000, v{s+1}')
            for j in range(8): e(f'v_pk_mul_f32 {pr(R+2*j)}, {pr(KU+2*j)}, {pr(WU+6)}')
            for tap in (2, 1, 0):
                for j in range(8): e(f'v_pk_fma_f32 {pr(R+2*j)}, {pr(KU+2*(j+3-tap))}, {pr(WU+2*tap)}, {pr(R+2*j)}')
            for j in range(8): e(f'v_pk_mul_f32 {pr(R+2*j)}, {pr(R+2*j)}, {pr(VU+2*j)}')
            o = O + (d & 1) * 8
            for cc in range(2):
                for q in range(4):
                    e(f'v_cvt_pk_bf16_f32 v{o+4*cc+q}, v{R+2*(7-2*q)+cc}, v{R+2*(6-2*q)+cc}')
                e(f'ds_write_b128 v1, v[{o+4*cc}:{o+4*cc+3}] offset:{(2*d+cc)*128}')
        e('s_waitcnt lgkmcnt(0)')
        e('s_barrier')
        e('s_lshl_b32 s60, s30, 13')
        e('v_add_u32 v1, s60, v8')
        for i in range(8): e(f'ds_read_b128 v[{16+4*i}:{19+4*i}], v1 offset:{i*1024}')
        e('v_lshrrev_b32 v2, 3, v0\nv_lshlrev_b32 v2, 12, v2\nv_and_b32 v3, 7, v0\nv_lshl_add_u32 v2, v3, 4, v2')
        e(f's_lshl_b32 s60, s30, 18\ns_lshl_b32 s61, s62, 7\ns_sub_u32 s60, s60, s61\ns_add_u32 s60, s60, {WS_KVT + 3968}')
        for i in range(8):
            e(f'v_xor_b32 v3, {i*16}, v2')
            e(f's_waitcnt lgkmcnt({7-i})')
            e(f'buffer_store_dwordx4 v[{16+4*i}:{19+4*i}], v3, s[40:43], s60 offen sc1')
            e('s_add_u32 s60, s60, 32768')
        e('s_waitcnt vmcnt(0)')
        e('s_barrier')
        e('s_cmp_lg_u32 s30, 0\ns_cbranch_scc1 L_SPNF')
        e(f's_lshl_b32 s60, s62, 3\ns_add_u32 s60, s60, {WS_FKV}')
        self.store_flag('s60', 4)
        e('L_SPNF:')
        self.stamp(3)
        e('s_cmp_ge_u32 s30, 4\ns_cbranch_scc1 L_SPH')
        e('v_and_b32 v4, 31, v0\nv_lshlrev_b32 v4, 3, v4')
        e(f's_mov_b32 s61, {WS_FKV}')
        self.poll64(4, 's61', 6, sleep=4)
        self.conv_loads()
        e('s_waitcnt vmcnt(0)')
        e('s_branch L_CONV')
        e('L_SPH:')
        vm = VM()
        self.wd_setup()
        for i in range(6): tokA = self.wd_dma(vm, i, 'A', i)
        for i in range(6): tokB = self.wd_dma(vm, 6 + i, 'B', i)
        self.wd_tail(vm, tokA, tokB)
        e('s_branch L_G2')

    def build(self):
        self.prologue()
        self.g1_mfma()
        self.conv()
        self.g1_helper()
        self.g2()
        self.spare()
        self.e('L_END:')
        body = self.e.text()
        hdr = open('parallel_sum__ssm_conv_h3__glu_gated_geglu__prompt.s.ref').read().split('; Override launch')[0]
        s = hdr + f'; @launch grid=(256,1,1) block=(512,1,1) lds={LDS_TOTAL}\n'
        s += f'.amdgcn_target "amdgcn-amd-amdhsa--gfx950"\n.text\n.globl {NAME}\n.p2align 8\n.type {NAME},@function\n{NAME}:\n'
        s += body + '    s_endpgm\n'
        s += f'''.section .rodata,"a"
.p2align 6
.amdhsa_kernel {NAME}
  .amdhsa_next_free_vgpr 256
  .amdhsa_next_free_sgpr 102
  .amdhsa_accum_offset 256
  .amdhsa_group_segment_fixed_size 0
  .amdhsa_kernarg_size 104
  .amdhsa_user_sgpr_count 2
  .amdhsa_user_sgpr_kernarg_segment_ptr 1
  .amdhsa_system_sgpr_workgroup_id_x 1
.end_amdhsa_kernel
'''
        return s

if __name__ == '__main__':
    out = sys.argv[1]
    stamps = 'stamps' in sys.argv[2:]
    open(out, 'w').write(Gen(stamps=stamps, opt=set(sys.argv[2:])).build())
```

```python
import sys, struct
from emit import Em

NAME = 'parallel_sum__ssm_conv_h3__glu_gated_geglu__prompt_kernel'

WS_EPOCH = 0
WS_FKV = 0x1000
WS_FH = 0x2000
WS_FY = 0x8000
WS_STATS = 0x10000
WS_CS = 0x20000
WS_KVT = 0x100000
WS_YS = 0x300000
WS_HS = 0x500000
WS_DBG = 0xD00000
WS_SIZE = 0xE00000

SLOT = [65536, 16384, 114688]
L_CSF = 0
L_MF = 4096
L_RS = 12288
L_NONCE = 13312
IMG = 16384
HE_SZ = 4160
HO_OFF = 4160
KV_OFF = 8448
CH_SZ = 13056
L_CNT = 47104
XBLK = [0, 8192, 49152, 57344]
LDS_TOTAL = 163840

def f2u(x):
    return struct.unpack('<I', struct.pack('<f', x))[0]

K1C = -2.0 * 1.4426950408889634 * 0.7978845608028654
K2C = K1C * 0.044715
TAGX = 0x5bd1e995
POLL_LIMIT = 200000

class VM:
    def __init__(self): self.n = 0
    def issue(self, k=1):
        self.n += k; return self.n
    def wait(self, e, tok):
        c = self.n - tok
        assert 0 <= c <= 63, c
        e(f's_waitcnt vmcnt({c})')

class Gen:
    def __init__(self, stamps=False, opt=None):
        self.e = Em()
        self.stamps = stamps
        self.opt = opt or {}

    def srd(self, d, ptr, size):
        e = self.e
        e(f's_mov_b32 s{d}, s{ptr}\ns_mov_b32 s{d+1}, s{ptr+1}\ns_mov_b32 s{d+2}, {size}\ns_mov_b32 s{d+3}, 0x20000')

    def stamp(self, k):
        if self.stamps:
            self.e(f's_memtime s[98:99]\ns_waitcnt lgkmcnt(0)\ns_mov_b32 s{80+k}, s98')

    def dump_stamps(self):
        if not self.stamps: return
        e = self.e
        e('s_waitcnt vmcnt(0) lgkmcnt(0)')
        self.stamp(15)
        e('s_lshl_b32 s60, s2, 3\ns_add_u32 s60, s60, s30\ns_lshl_b32 s60, s60, 6\ns_add_u32 s60, s60, %d' % WS_DBG)
        e('v_mov_b32 v1, 0')
        for g in range(4):
            for i in range(4):
                e(f'v_mov_b32 v{4+i}, s{80+4*g+i}')
            e(f'buffer_store_dwordx4 v[4:7], v1, s[40:43], s60 offen offset:{16*g}')
        e('s_waitcnt vmcnt(0)')

    def poll64(self, vaddr, soff, t, sleep=1):
        e = self.e
        L = e.newlabel('POLL'); D = e.newlabel('POLLD')
        e(f's_mov_b32 s72, {POLL_LIMIT}')
        e(f'{L}:')
        e(f'buffer_load_dwordx2 v[{t}:{t+1}], v{vaddr}, s[40:43], {soff} offen sc1')
        e('s_waitcnt vmcnt(0)')
        e(f'v_cmp_ne_u64 vcc, s[70:71], v[{t}:{t+1}]')
        e(f's_cbranch_vccz {D}')
        e(f's_sleep {sleep}')
        e('s_sub_u32 s72, s72, 1')
        e('s_cmp_lg_u32 s72, 0')
        e(f's_cbranch_scc1 {L}')
        e(f'{D}:')

    def get_nonce_blocking(self, t):
        e = self.e
        L = e.newlabel('NON'); D = e.newlabel('NOND')
        e(f's_mov_b32 s72, {POLL_LIMIT}')
        e(f'v_mov_b32 v{t+2}, 0')
        e(f'{L}:')
        e(f'buffer_load_dwordx2 v[{t}:{t+1}], v{t+2}, s[56:59], 0 offen sc1')
        e('s_waitcnt vmcnt(0)')
        e(f'v_readfirstlane_b32 s70, v{t}')
        e(f'v_readfirstlane_b32 s71, v{t+1}')
        e('s_cmp_lg_u32 s71, 0')
        e(f's_cbranch_scc1 {D}')
        e('s_sleep 2')
        e('s_sub_u32 s72, s72, 1')
        e('s_cmp_lg_u32 s72, 0')
        e(f's_cbranch_scc1 {L}')
        e(f'{D}:')
        e(f's_xor_b32 s71, s70, {TAGX}')

    def store_flag(self, soff_reg, t):
        e = self.e
        e(f'v_mov_b32 v{t}, s70\nv_mov_b32 v{t+1}, s71\nv_mov_b32 v{t+2}, 0')
        e('s_mov_b64 exec, 1')
        e(f'buffer_store_dwordx2 v[{t}:{t+1}], v{t+2}, s[40:43], {soff_reg} offen sc1')
        e('s_mov_b64 exec, -1')

    def prologue(self):
        e = self.e
        e('s_cmp_ge_u32 s2, 256')
        e('s_cbranch_scc1 L_END')
        e('s_load_dwordx16 s[4:19], s[0:1], 0')
        e('s_load_dwordx8 s[20:27], s[0:1], 64')
        e('s_load_dwordx2 s[28:29], s[0:1], 96')
        if self.stamps:
            e('s_memtime s[98:99]')
        e('v_lshrrev_b32 v1, 6, v0')
        e('v_and_b32 v0, 63, v0')
        e('v_readfirstlane_b32 s30, v1')
        e('s_and_b32 s31, s2, 7')
        e('s_lshr_b32 s32, s2, 3')
        e('s_cmp_lg_u32 s30, 0')
        e('s_cbranch_scc1 L_NOPF')
        e('s_getpc_b64 s[60:61]')
        e('L_PC:')
        e('v_lshlrev_b32 v1, 5, v0')
        e('v_add_u32 v1, s32, v1')
        e('v_lshlrev_b32 v1, 7, v1')
        e('v_cmp_gt_u32 vcc, L_END-L_PC, v1')
        e('s_and_saveexec_b64 s[62:63], vcc')
        e('s_cbranch_execz L_PFX')
        e('global_load_dword v79, v1, s[60:61]')
        e('L_PFX:')
        e('s_mov_b64 exec, s[62:63]')
        e('L_NOPF:')
        e('s_and_b32 s39, s32, 3')
        e('s_lshr_b32 s38, s32, 2')
        e('s_lshl_b32 s37, s31, 2')
        e('s_add_u32 s37, s37, s39')
        e('s_lshr_b32 s60, s31, 2')
        e('s_and_b32 s61, s31, 3')
        e('s_lshl_b32 s34, s60, 2')
        e('s_add_u32 s34, s34, s39')
        e('s_mul_i32 s35, s61, 7')
        e('s_add_u32 s35, s35, s38')
        e('s_lshl_b32 s36, s61, 1')
        e('s_lshl_b32 s60, s60, 2')
        e('s_add_u32 s36, s36, s60')
        e('s_and_b32 s36, s36, 7')
        e('s_waitcnt lgkmcnt(0)')
        if self.stamps:
            e('s_mov_b32 s80, s98')
            for k in range(1, 16): e(f's_mov_b32 s{80+k}, 0')
            e('s_memrealtime s[98:99]\ns_waitcnt lgkmcnt(0)\ns_mov_b32 s94, s98')
        self.srd(40, 28, WS_SIZE)
        self.srd(44, 4, 2097152)
        if 'probe' in self.opt:
            self.srd(48, 16, 2097152)
            e('s_lshl_b32 s60, s2, 3\ns_add_u32 s60, s60, s30\ns_lshl_b32 s60, s60, 7')
            e('v_mov_b32 v1, 0')
            for i in range(8):
                e('buffer_load_dword v2, v1, s[48:51], s60 offen')
                e('s_add_u32 s60, s60, 0x40000')
                e('s_waitcnt vmcnt(0)')
        e('s_cmp_ge_u32 s32, 28')
        e('s_cbranch_scc1 L_SPARE')
        e('s_cmp_ge_u32 s30, 4')
        e('s_cbranch_scc1 L_HELP')

    def g1_mfma(self):
        e = self.e
        ACC = 128; FR = 80
        XA = [16, 24]; WA = [20, 28]
        e('v_and_b32 v1, 31, v0')
        e('v_lshrrev_b32 v2, 5, v0')
        e('v_bfe_u32 v3, v1, 1, 3')
        e('v_xor_b32 v3, v3, v2')
        e('v_lshlrev_b32 v3, 4, v3')
        e('v_lshl_add_u32 v3, v1, 7, v3')
        e('s_lshl_b32 s60, s30, 13')
        e('s_add_u32 s60, s60, 16384')
        e('v_add_u32 v16, s60, v3')
        for ks in range(1, 4): e(f'v_xor_b32 v{16+ks}, {ks*32}, v16')
        e('v_bfe_u32 v3, v0, 2, 2')
        e('v_bfe_u32 v4, v0, 1, 1')
        e('v_and_b32 v5, 1, v0')
        e('v_bfe_u32 v6, v0, 4, 1')
        e('v_lshrrev_b32 v7, 1, v3')
        e('v_lshlrev_b32 v7, 1, v7')
        e('v_lshl_add_u32 v7, v4, 2, v7')
        e('v_xor_b32 v7, v7, v5')
        e('v_lshlrev_b32 v7, 4, v7')
        e('v_lshl_add_u32 v7, v6, 3, v7')
        e('v_lshl_add_u32 v3, v2, 3, v3')
        e('v_lshl_add_u32 v7, v3, 7, v7')
        e('v_lshl_add_u32 v7, v4, 13, v7')
        e(f'v_add_u32 v20, {16384+32768}, v7')
        for j in range(1, 4): e(f'v_xor_b32 v{20+j}, {j*32}, v20')
        for i in range(8): e(f'v_add_u32 v{24+i}, {114688-16384}, v{16+i}')
        for i in range(128): e(f'v_mov_b32 v{ACC+i}, 0')

        def frag(st, which):
            return FR + st * 24 + which * 4
        def reads(ls, ks, st):
            base = SLOT[ls % 3]
            s = 1 if base == 114688 else 0
            off = base - (114688 if s else 16384)
            def X(tt):
                d = frag(st, tt)
                return [f'ds_read_b128 v[{d}:{d+3}], v{XA[s]+ks} offset:{off + tt*4096}']
            def W(j):
                d = frag(st, 2 + j)
                return [f'ds_read_b64_tr_b16 v[{d+2*t}:{d+2*t+1}], v{WA[s]+j} offset:{off + (16*ks+4*t)*128}' for t in range(2)]
            return X(0) + W(0) + W(1) + X(1) + W(2) + W(3)
        def extra_reads(st):
            def X(tt):
                d = frag(st, tt); return [f'ds_read_b128 v[{d}:{d+3}], v9 offset:{L_MF + tt*1024}']
            def W(j):
                d = frag(st, 2 + j); return [f'ds_read_b128 v[{d}:{d+3}], v8 offset:{L_CSF + j*1024}']
            return X(0) + W(0) + W(1) + X(1) + W(2) + W(3)
        e('v_lshlrev_b32 v8, 4, v0')
        e('s_lshl_b32 s60, s30, 11')
        e('v_add_u32 v9, s60, v8')
        order = [(0, 0), (0, 1), (1, 0), (1, 1), (0, 2), (1, 2), (0, 3), (1, 3)]
        needn = [3, 5, 6, 6, 8, 8, 10, 10]
        needx = [2, 3, 4, 4, 5, 5, 6, 6]
        def mfma(st, tt, j):
            a = ACC + (tt * 4 + j) * 16
            A = frag(st, 2 + j); B = frag(st, tt)
            return f'v_mfma_f32_32x32x16_bf16 v[{a}:{a+15}], v[{A}:{A+3}], v[{B}:{B+3}], v[{a}:{a+15}]'
        self.stamp(1)
        e('s_barrier')
        self.stamp(2)
        for r in reads(0, 0, 0): e(r)
        steps = [(ls, ks) for ls in range(8) for ks in range(4)] + [(8, 0)]
        for si, (ls, ks) in enumerate(steps):
            st = si & 1
            cur_n = 6 if ls == 8 else 10
            nd = needx if ls == 8 else needn
            if si + 1 < len(steps):
                nls, nks = steps[si + 1]
                nxt = extra_reads(st ^ 1) if nls == 8 else reads(nls, nks, st ^ 1)
            else:
                nxt = []
            boundary = (ks == 3)
            issued = 0
            done_cur = 0
            if boundary: plan = [0, 0, 2, 2, 2, 2, 2, 0]
            else: plan = [2, 2, 2, 2, 1, 1, 0, 0]
            for mi, (tt, j) in enumerate(order):
                if nd[mi] > done_cur:
                    e(f's_waitcnt lgkmcnt({cur_n - nd[mi] + issued})')
                    done_cur = nd[mi]
                if 'nomfma' not in self.opt: e(mfma(st, tt, j))
                if boundary and mi == 1:
                    e('s_waitcnt lgkmcnt(0)')
                    done_cur = cur_n
                    e('s_barrier')
                for _ in range(plan[mi]):
                    if issued < len(nxt):
                        if not ('noreads' in self.opt or ('notr' in self.opt and '_tr_' in nxt[issued]) or ('nob128' in self.opt and 'b128' in nxt[issued])): e(nxt[issued])
                        issued += 1
            assert issued == len(nxt)
        self.stamp(3)
        e('v_lshlrev_b32 v10, 2, v1')
        e('s_lshl_b32 s60, s30, 8')
        e('v_add_u32 v10, s60, v10')
        e(f'ds_read_b32 v32, v10 offset:{L_RS}')
        e(f'ds_read_b32 v33, v10 offset:{L_RS+128}')
        e('v_mov_b32 v11, 0')
        e(f'ds_read_b32 v34, v11 offset:{L_NONCE}')
        self.conv_loads()
        e('s_waitcnt lgkmcnt(0)')
        e('v_readfirstlane_b32 s70, v34')
        e(f's_xor_b32 s71, s70, {TAGX}')
        for tt in range(2):
            b = 36 + 6 * tt
            e(f'v_rcp_f32 v35, v{32+tt}')
            e(f'v_mul_f32 v{b+4}, v{32+tt}, v{32+tt}')
            e(f'v_mul_f32 v{b}, {f2u(K1C):#x}, v35')
            e(f'v_mul_f32 v{b+2}, v35, v35')
            e(f'v_mul_f32 v{b+2}, v{b+2}, v35')
            e(f'v_mul_f32 v{b+2}, {f2u(K2C):#x}, v{b+2}')
            e(f'v_mov_b32 v{b+1}, v{b}')
            e(f'v_mov_b32 v{b+5}, v{b+4}')
            e(f'v_mov_b32 v{b+3}, v{b+2}')
        e('s_lshl_b32 s60, s34, 3\ns_lshl_b32 s61, s30, 1\ns_add_u32 s60, s60, s61')
        e('s_mul_i32 s60, s60, 112\ns_lshl_b32 s61, s35, 2\ns_add_u32 s60, s60, s61\ns_lshl_b32 s60, s60, 10')
        e(f's_add_u32 s60, s60, {WS_HS}')
        e(f's_add_u32 s61, s60, {112*1024}')
        T = 48
        for tt in range(2):
            b = 36 + 6 * tt
            for j in range(4):
                a = ACC + (tt * 4 + j) * 16
                T = 48 + ((tt * 4 + j) & 1) * 12
                P = [0, 2, 8, 10]
                pr = lambda x: f'v[{x}:{x+1}]'
                for i, p in enumerate(P): e(f'v_pk_mul_f32 {pr(T+2*i)}, {pr(a+p)}, {pr(a+p)}')
                for i, p in enumerate(P): e(f'v_pk_fma_f32 {pr(T+2*i)}, {pr(T+2*i)}, {pr(b+2)}, {pr(b)}')
                for i, p in enumerate(P): e(f'v_pk_mul_f32 {pr(T+2*i)}, {pr(T+2*i)}, {pr(a+p)}')
                for i in range(8): e(f'v_exp_f32 v{T+i}, v{T+i}')
                for i, p in enumerate(P): e(f'v_pk_mul_f32 {pr(a+p)}, {pr(a+p)}, {pr(a+p+4)}')
                for i, p in enumerate(P): e(f'v_pk_fma_f32 {pr(T+2*i)}, {pr(T+2*i)}, {pr(b+4)}, {pr(b+4)}')
                for i in range(8): e(f'v_rcp_f32 v{T+i}, v{T+i}')
                for i, p in enumerate(P): e(f'v_pk_mul_f32 {pr(a+p)}, {pr(a+p)}, {pr(T+2*i)}')
                for i, p in enumerate(P): e(f'v_cvt_pk_bf16_f32 v{T+8+i}, v{a+p}, v{a+p+1}')
                e(f'buffer_store_dwordx4 v[{T+8}:{T+11}], v8, s[40:43], s{60+tt} offen offset:{j*1024} sc1')
        self.stamp(4)
        e('s_lshl_b32 s60, s34, 2\ns_add_u32 s60, s60, s30\ns_lshl_b32 s60, s60, 2\ns_and_b32 s61, s31, 3\ns_add_u32 s60, s60, s61')
        e(f's_lshl_b32 s60, s60, 7\ns_lshl_b32 s61, s38, 3\ns_add_u32 s60, s60, s61\ns_add_u32 s60, s60, {WS_FH}')
        e('s_waitcnt vmcnt(0)')
        self.store_flag('s60', 4)
        self.stamp(5)
        e('s_branch L_CONV')

    def conv_loads(self):
        e = self.e
        self.srd(48, 12, 2097152)
        self.srd(52, 14, 1024)
        e('s_lshr_b32 s62, s30, 1')
        e('s_and_b32 s63, s30, 1')
        e('s_lshl_b32 s64, s2, 1\ns_add_u32 s64, s64, s62')
        e(f's_mul_i32 s65, s62, {CH_SZ}\ns_add_u32 s65, s65, {IMG}')
        e('s_lshl_b32 s60, s64, 12\ns_lshl_b32 s61, s63, 1\ns_add_u32 s60, s60, s61')
        e(f's_mul_i32 s61, s63, {HO_OFF}\ns_add_u32 s61, s61, s65\ns_add_u32 s66, s61, 32')
        e('s_mov_b32 m0, s66')
        for i in range(4):
            e(f'buffer_load_dwordx4 v8, s[48:51], s60 offen offset:{i*1024} lds')
        e('v_mov_b32 v12, 0')
        e('s_lshl_b32 s67, s64, 12')
        e('buffer_load_ushort v13, v12, s[48:51], s67 offen')
        e('s_lshl_b32 s67, s64, 1')
        e('buffer_load_ushort v14, v12, s[52:55], s67 offen')
        e(f's_lshl_b32 s60, s64, 12\ns_lshl_b32 s67, s63, 11\ns_add_u32 s60, s60, s67\ns_add_u32 s60, s60, {WS_KVT}')
        e(f's_add_u32 s67, s67, s65\ns_add_u32 s67, s67, {KV_OFF}')
        e('s_mov_b32 m0, s67')
        for i in range(2):
            e(f'buffer_load_dwordx4 v8, s[40:43], s60 offen offset:{i*1024} sc1 lds')
        e('s_mov_b32 s73, s61\ns_mov_b32 s74, s65')

    def conv(self):
        e = self.e
        e('L_CONV:')
        e('; ---- conv ----')
        e('s_and_b32 s63, s30, 1')
        e('v_lshlrev_b32 v15, 16, v13')
        e('v_cmp_eq_u32 vcc, 7, v0')
        e('s_cmp_eq_u32 s63, 1')
        e('s_cselect_b64 vcc, vcc, 0')
        e('v_mov_b32 v12, 0')
        e('v_cndmask_b32 v15, v12, v15, vcc')
        e('v_lshlrev_b32 v16, 2, v0')
        e('v_add_u32 v16, s73, v16')
        e('s_mov_b64 exec, 0xff')
        e('ds_write_b32 v16, v15')
        e('s_mov_b64 exec, -1')
        e('v_lshlrev_b32 v16, 2, v0')
        e('s_lshl_b32 s60, s63, 8')
        e(f's_add_u32 s60, s60, {KV_OFF+4096}')
        e('s_add_u32 s60, s60, s74')
        e('v_add_u32 v16, s60, v16')
        e('ds_write_b32 v16, v12')
        e(f'ds_write_b32 v12, v12 offset:{L_CNT}')
        ACC = 32; AF = [64, 96]; BF = [128, 160]
        e('v_and_b32 v1, 15, v0')
        e('v_lshrrev_b32 v2, 4, v0')
        e('v_add_u32 v3, 1, v1')
        e('v_lshrrev_b32 v3, 1, v3')
        e('v_lshl_add_u32 v3, v2, 2, v3')
        e('v_lshlrev_b32 v3, 2, v3')
        e('v_and_b32 v4, 1, v1')
        e('v_xor_b32 v4, 1, v4')
        e(f'v_mul_u32_u24 v4, {HO_OFF}, v4')
        e('v_add_u32 v3, v3, v4')
        e('s_lshl_b32 s60, s63, 8')
        e('s_add_u32 s60, s60, s74')
        e('v_add_u32 v20, s60, v3')
        for i in range(1, 4): e(f'v_add_u32 v{20+i}, {i*1024}, v20')
        e('v_lshlrev_b32 v3, 5, v1')
        e('v_lshlrev_b32 v4, 4, v2')
        e('v_sub_u32 v3, v4, v3')
        e(f's_add_u32 s60, s60, {KV_OFF+480}')
        e('v_add_u32 v24, s60, v3')
        e('v_lshlrev_b32 v3, 3, v2')
        e('v_add_u32 v3, v3, v1')
        e('v_sub_u32 v3, 15, v3')
        e('v_and_b32 v4, 1, v3')
        e('v_lshlrev_b32 v4, 4, v4')
        e('v_lshlrev_b32 v4, v4, v14')
        e('v_ashrrev_i32 v3, 1, v3')
        for d in range(4):
            e(f'v_cmp_eq_u32 vcc, {d}, v3')
            e(f'v_cndmask_b32 v{26+d}, v12, v4, vcc')
        for i in range(32): e(f'v_mov_b32 v{ACC+i}, 0')
        e('s_waitcnt lgkmcnt(0)')
        e('s_barrier')
        self.stamp(6)
        def rd(p, st):
            out = []
            for a in range(8):
                d = AF[st] + 4 * a
                o = (a & 1) * 128 + p * 16
                out.append(f'ds_read2_b32 v[{d}:{d+1}], v{20 + (a >> 1)} offset0:{o} offset1:{o+1}')
                out.append(f'ds_read2_b32 v[{d+2}:{d+3}], v{20 + (a >> 1)} offset0:{o+2} offset1:{o+3}')
                d = BF[st] + 4 * a
                out.append(f'ds_read_b128 v[{d}:{d+3}], v24 offset:{(7-a)*512 + p*64}')
            return out
        for r in rd(0, 0): e(r)
        for p in range(4):
            st = p & 1
            nxt = rd(p + 1, st ^ 1) if p < 3 else []
            e('s_waitcnt lgkmcnt(0)')
            k = 0
            for a in range(8):
                for b in range(8 - a):
                    g = a + b
                    e(f'v_mfma_f32_16x16x32_bf16 v[{ACC+4*g}:{ACC+4*g+3}], v[{AF[st]+4*a}:{AF[st]+4*a+3}], v[{BF[st]+4*b}:{BF[st]+4*b+3}], v[{ACC+4*g}:{ACC+4*g+3}]')
                    if k < len(nxt):
                        e(nxt[k]); k += 1
            if p == 0:
                e('s_cmp_lg_u32 s63, 0')
                e('s_cbranch_scc1 L_NOD')
                for b in range(8):
                    e(f'v_mfma_f32_16x16x32_bf16 v[{ACC+4*b}:{ACC+4*b+3}], v[26:29], v[{BF[st]+4*b}:{BF[st]+4*b+3}], v[{ACC+4*b}:{ACC+4*b+3}]')
                e('L_NOD:')
        self.stamp(7)
        e('v_lshlrev_b32 v8, 4, v0')
        e(f's_and_b32 s60, s30, 1\ns_lshl_b32 s60, s60, 13\ns_lshr_b32 s61, s30, 1\ns_mul_i32 s61, s61, 49152\ns_add_u32 s60, s60, s61')
        e('v_add_u32 v9, s60, v8')
        for g in range(8):
            e(f'ds_write_b128 v9, v[{ACC+4*g}:{ACC+4*g+3}] offset:{g*1024}')
        e('s_waitcnt lgkmcnt(0)')
        e('v_mov_b32 v10, 1')
        e('s_mov_b64 exec, 1')
        e(f'ds_add_u32 v12, v10 offset:{L_CNT}')
        e('s_mov_b64 exec, -1')
        e('v_lshrrev_b32 v16, 3, v0')
        e('s_lshl_b32 s60, s30, 3')
        e('v_add_u32 v16, s60, v16')
        e('v_and_b32 v17, 7, v0')
        e('v_lshlrev_b32 v18, 10, v16')
        e('v_lshl_add_u32 v18, v17, 4, v18')
        e('s_lshl_b32 s75, s37, 16\ns_lshl_b32 s60, s38, 7\ns_add_u32 s75, s75, s60')
        e('s_add_u32 s76, s75, 32768')
        e('buffer_load_dwordx4 v[64:67], v18, s[44:47], s75 offen')
        e('buffer_load_dwordx4 v[68:71], v18, s[44:47], s76 offen')
        e('v_lshlrev_b32 v19, 3, v16')
        e(f's_lshl_b32 s60, s37, 9\ns_add_u32 s60, s60, {WS_STATS}')
        e('buffer_load_dword v72, v19, s[40:43], s60 offen sc1')
        e('buffer_load_dword v73, v19, s[40:43], s60 offen offset:256 sc1')
        L = e.newlabel('SB')
        e(f's_mov_b32 s72, {POLL_LIMIT}')
        e(f'{L}:')
        e(f'ds_read_b32 v10, v12 offset:{L_CNT}')
        e('s_sub_u32 s72, s72, 1')
        e('s_waitcnt lgkmcnt(0)')
        e('v_readfirstlane_b32 s60, v10')
        e('s_cmp_eq_u32 s72, 0')
        e(f's_cbranch_scc1 {L}_D')
        e('s_cmp_lt_u32 s60, 4')
        e(f's_cbranch_scc1 {L}')
        e(f'{L}_D:')
        e('s_lshl_b32 s60, s30, 11')
        e('v_add_u32 v9, s60, v8')
        for gg in range(2):
            for src in range(4):
                d = 96 + (gg * 4 + src) * 4
                e(f'ds_read_b128 v[{d}:{d+3}], v9 offset:{XBLK[src] + gg*1024}')
        e('v_lshrrev_b32 v3, 2, v1')
        e('v_lshlrev_b32 v3, 16, v3')
        e('v_and_b32 v4, 3, v1')
        e('v_lshl_add_u32 v3, v4, 6, v3')
        e('v_lshl_add_u32 v3, v2, 4, v3')
        e(f's_lshl_b32 s60, s30, 19\ns_lshl_b32 s61, s2, 8\ns_add_u32 s60, s60, s61\ns_add_u32 s60, s60, {WS_YS}')
        e('s_add_u32 s61, s60, 0x40000')
        e('s_waitcnt lgkmcnt(0)')
        for gg in range(2):
            d = 96 + gg * 16
            for r in range(4):
                e(f'v_add_f32 v{d+r}, v{d+r}, v{d+4+r}')
                e(f'v_add_f32 v{d+8+r}, v{d+8+r}, v{d+12+r}')
            for r in range(4):
                e(f'v_cvt_pk_bf16_f32 v{d+4+r}, v{d+r}, v{d+8+r}')
            e(f'buffer_store_dwordx4 v[{d+4}:{d+7}], v3, s[40:43], s{60+gg} offen sc1')
        e(f's_lshl_b32 s60, s30, 11\ns_lshl_b32 s61, s2, 3\ns_add_u32 s60, s60, s61\ns_add_u32 s60, s60, {WS_FY}')
        e('s_waitcnt vmcnt(0)')
        self.store_flag('s60', 4)
        self.stamp(8)
        e('v_and_b32 v4, 31, v0\nv_lshlrev_b32 v4, 3, v4')
        e(f's_lshr_b32 s60, s37, 3\ns_lshl_b32 s60, s60, 11\ns_lshl_b32 s61, s38, 8\ns_add_u32 s60, s60, s61\ns_add_u32 s60, s60, {WS_FY}')
        self.poll64(4, 's60', 6, sleep=4)
        self.stamp(9)
        e('v_lshlrev_b32 v4, 10, v17')
        e('v_lshl_add_u32 v4, v16, 2, v4')
        e(f's_lshl_b32 s60, s37, 16\ns_lshl_b32 s61, s38, 13\ns_add_u32 s60, s60, s61\ns_add_u32 s60, s60, {WS_YS}')
        for ee in range(2):
            for q in range(4):
                e(f'buffer_load_dword v{76+ee*4+q}, v4, s[40:43], s60 offen offset:{q*256+ee*128} sc1')
        for ee in range(2):
            e(f'v_lshlrev_b32 v74, 16, v{72+ee}')
            e(f'v_and_b32 v75, 0xffff0000, v{72+ee}')
            e('v_rcp_f32 v75, v75')
            for q in range(4):
                x = 64 + ee * 4 + q
                d = 96 + ee * 16 + 2 * q
                e(f'v_lshlrev_b32 v{d}, 16, v{x}')
                e(f'v_and_b32 v{d+1}, 0xffff0000, v{x}')
                e(f'v_sub_f32 v{d+8}, v{d}, v74')
                e(f'v_sub_f32 v{d+9}, v{d+1}, v74')
                e(f'v_mul_f32 v{d+8}, v{d+8}, v75')
                e(f'v_mul_f32 v{d+9}, v{d+9}, v75')
        e('s_waitcnt vmcnt(0)')
        for ee in range(2):
            for q in range(4):
                y = 76 + ee * 4 + q
                d = 96 + ee * 16 + 2 * q
                e(f'v_lshlrev_b32 v74, 16, v{y}')
                e(f'v_and_b32 v75, 0xffff0000, v{y}')
                e(f'v_fmac_f32 v{d}, v{d+8}, v74')
                e(f'v_fmac_f32 v{d+1}, v{d+9}, v75')
        e('v_and_b32 v4, 7, v16')
        e('v_lshlrev_b32 v5, 1, v17')
        e('v_xor_b32 v4, v4, v5')
        e('v_lshlrev_b32 v4, 4, v4')
        e('v_lshl_add_u32 v4, v16, 8, v4')
        e(f'v_add_u32 v4, {65536}, v4')
        e('v_xor_b32 v5, 16, v4')
        e('v_add_u32 v6, 49152, v4')
        e('v_add_u32 v7, 49152, v5')
        self.srd(48, 24, 2097152)
        self.stamp(10)
        e('s_barrier')
        self.stamp(11)
        for ee in range(2):
            for kq in range(4):
                for h in range(2):
                    d = 128 + ((ee * 4 + kq) * 2 + h) * 4
                    e(f'ds_read_b128 v[{d}:{d+3}], v{4+h+2*ee} offset:{kq*12288}')
        for ee in range(2):
            e(f's_waitcnt lgkmcnt({8 - 8*ee})')
            dd = 96 + ee * 16
            for kq in range(4):
                d = 128 + (ee * 4 + kq) * 8
                for i in range(0, 8, 2):
                    e(f'v_pk_add_f32 v[{dd+i}:{dd+i+1}], v[{dd+i}:{dd+i+1}], v[{d+i}:{d+i+1}]')
            for q in range(4):
                e(f'v_cvt_pk_bf16_f32 v{dd+8+q}, v{dd+2*q}, v{dd+2*q+1}')
            e(f'buffer_store_dwordx4 v[{dd+8}:{dd+11}], v18, s[48:51], s{75+ee} offen')
        self.dump_stamps()
        e('s_endpgm')

    def poff(self, kq):
        return kq * 16384

    def wd_setup(self):
        e = self.e
        self.srd(52, 22, 1835008)
        e('s_sub_u32 s77, s30, 4')
        e('v_lshrrev_b32 v1, 3, v0')
        e('v_bfe_u32 v2, v0, 4, 1')
        e('v_lshlrev_b32 v2, 2, v2')
        e('v_and_b32 v3, 7, v0')
        e('v_xor_b32 v2, v2, v3')
        e('v_lshlrev_b32 v2, 4, v2')
        e('v_lshl_add_u32 v10, v1, 10, v2')
        e('s_mul_i32 s78, s77, 458752\ns_lshl_b32 s60, s38, 7\ns_add_u32 s78, s78, s60')
        e('s_mul_i32 s79, s77, 12288')
        e('v_bfe_u32 v1, v0, 2, 2')
        e('v_lshrrev_b32 v2, 5, v0')
        e('v_lshl_add_u32 v2, v2, 3, v1')
        e('v_bfe_u32 v3, v0, 4, 1')
        e('v_bfe_u32 v4, v0, 1, 1')
        e('v_lshl_add_u32 v3, v3, 1, v4')
        e('v_lshrrev_b32 v1, 1, v1')
        e('v_lshlrev_b32 v1, 2, v1')
        e('v_xor_b32 v3, v3, v1')
        e('v_lshlrev_b32 v3, 4, v3')
        e('v_and_b32 v4, 1, v0')
        e('v_lshl_add_u32 v3, v4, 3, v3')
        e('v_lshl_add_u32 v3, v2, 7, v3')
        e(f's_add_u32 s60, s79, {65536}')
        e('v_add_u32 v11, s60, v3')
        e('v_xor_b32 v12, 64, v11')

    def wd_dma(self, vm, ks, region, pos):
        e = self.e
        base = 114688 if region == 'A' else 65536
        e(f's_add_u32 s60, s78, {ks*16384}')
        e(f's_add_u32 m0, s79, {base + pos*2048}')
        e('buffer_load_dwordx4 v10, s[52:55], s60 offen lds')
        e(f's_add_u32 s60, s78, {ks*16384 + 8192}')
        e(f's_add_u32 m0, s79, {base + pos*2048 + 1024}')
        e('buffer_load_dwordx4 v10, s[52:55], s60 offen lds')
        return vm.issue(2)

    def wd_read(self, dst, region, pos):
        off = (49152 if region == 'A' else 0) + pos * 2048
        return [f'ds_read_b64_tr_b16 v[{dst+4*ct+2*t}:{dst+4*ct+2*t+1}], v{11+ct} offset:{off + t*512}' for ct in range(2) for t in range(2)]

    WD0 = 80
    def wd_tail(self, vm, tokA, tokB):
        e = self.e
        W = self.WD0
        vm.wait(e, tokA)
        for i in range(6):
            for r in self.wd_read(W + 8 * i, 'A', i): e(r)
            if i % 2: e('s_waitcnt lgkmcnt(4)')
        e('s_waitcnt lgkmcnt(0)')
        tokC = None
        for i in range(6):
            t = self.wd_dma(vm, 12 + i, 'A', i)
            if i == 3: tokC = t
        vm.wait(e, tokB)
        for i in range(6):
            for r in self.wd_read(W + 8 * (6 + i), 'B', i): e(r)
            if i % 2: e('s_waitcnt lgkmcnt(4)')
        e('s_waitcnt lgkmcnt(0)')
        for i in range(6): self.wd_dma(vm, 18 + i, 'B', i)
        vm.wait(e, tokC)
        for i in range(4):
            for r in self.wd_read(W + 8 * (12 + i), 'A', i): e(r)
            if i % 2: e('s_waitcnt lgkmcnt(4)')
        e('s_waitcnt lgkmcnt(0)')
        for i in range(4): self.wd_dma(vm, 24 + i, 'A', i)

    def g1_helper(self):
        e = self.e
        vm = VM()
        e('L_HELP:')
        e('s_sub_u32 s77, s30, 4')
        e('s_and_b32 s62, s77, 1')
        e('s_lshr_b32 s63, s77, 1')
        e('s_cmp_eq_u32 s62, 0')
        e('s_cselect_b32 s48, s18, s20\ns_cselect_b32 s49, s19, s21')
        e('s_mov_b32 s50, 1835008\ns_mov_b32 s51, 0x20000')
        e('v_lshrrev_b32 v1, 3, v0')
        e('v_lshrrev_b32 v2, 4, v0')
        e('v_and_b32 v3, 7, v0')
        e('s_lshl_b32 s60, s62, 2')
        e('v_add_u32 v4, s60, v2')
        e('v_xor_b32 v4, v4, v3')
        e('v_lshlrev_b32 v4, 4, v4')
        e('v_lshl_add_u32 v13, v1, 10, v4')
        e('v_and_b32 v2, 1, v2')
        e('v_lshlrev_b32 v2, 1, v2')
        e('v_add_u32 v2, s60, v2')
        e('v_xor_b32 v2, v2, v3')
        e('v_lshlrev_b32 v2, 4, v2')
        e('v_mul_u32_u24 v1, 3584, v1')
        e('v_add_u32 v14, v1, v2')
        e('s_lshl_b32 s64, s34, 18\ns_lshl_b32 s60, s77, 13\ns_add_u32 s64, s64, s60')
        e('s_mul_i32 s65, s63, 28672\ns_lshl_b32 s60, s35, 7\ns_add_u32 s65, s65, s60')
        e('s_lshl_b32 s66, s77, 10')
        e('s_lshl_b32 s67, s62, 13\ns_lshl_b32 s60, s63, 10\ns_add_u32 s67, s67, s60\ns_add_u32 s67, s67, 32768')
        def stage(ls):
            if 'nodma' in self.opt and ls >= 1: return vm.n
            sl = SLOT[ls % 3]
            e(f's_add_u32 s60, s36, {ls}\ns_and_b32 s60, s60, 7')
            e('s_lshl_b32 s68, s60, 7\ns_add_u32 s68, s68, s64')
            e('s_mul_i32 s69, s60, 229376\ns_add_u32 s69, s69, s65')
            for j in range(4):
                e(f's_add_u32 m0, s67, {sl + j*2048}')
                e('buffer_load_dwordx4 v14, s[48:51], s69 offen lds')
                if j < 3: e('s_add_u32 s69, s69, 57344')
                for jj in (2 * j, 2 * j + 1):
                    e(f's_add_u32 m0, s66, {sl + jj*4096}')
                    e('buffer_load_dwordx4 v13, s[44:47], s68 offen lds')
                    if jj < 7: e('s_add_u32 s68, s68, 32768')
            return vm.issue(12)
        tok = {}
        tok[0] = stage(0)
        self.srd(56, 26, 256)
        e('s_cmp_lg_u32 s2, 0\ns_cbranch_scc1 L_NOPROD\ns_cmp_lg_u32 s30, 7\ns_cbranch_scc1 L_NOPROD')
        e('v_mov_b32 v1, 0')
        e('buffer_load_dword v2, v1, s[40:43], 0 offen sc1')
        e('s_waitcnt vmcnt(0)')
        e('v_add_u32 v2, 1, v2\nv_mov_b32 v3, 1')
        e('s_mov_b64 exec, 1')
        e('buffer_store_dwordx2 v[2:3], v1, s[56:59], 0 offen sc1')
        e('buffer_store_dword v2, v1, s[40:43], 0 offen sc1')
        e('s_mov_b64 exec, -1')
        e('s_waitcnt vmcnt(0)')
        e('L_NOPROD:')
        tok[1] = stage(1)
        e('v_lshrrev_b32 v2, 5, v0')
        e('v_bfe_u32 v3, v0, 2, 2')
        e('v_bfe_u32 v4, v0, 1, 1')
        e('v_and_b32 v5, 1, v0')
        e('v_bfe_u32 v6, v0, 4, 1')
        e('v_lshrrev_b32 v7, 1, v3')
        e('v_lshlrev_b32 v7, 1, v7')
        e('v_lshl_add_u32 v7, v4, 2, v7')
        e('v_xor_b32 v7, v7, v5')
        e('v_lshlrev_b32 v7, 4, v7')
        e('v_lshl_add_u32 v7, v6, 3, v7')
        e('v_lshl_add_u32 v3, v2, 3, v3')
        e('v_lshl_add_u32 v7, v3, 7, v7')
        e('v_lshl_add_u32 v7, v4, 13, v7')
        e('s_lshl_b32 s60, s77, 5')
        e('v_xor_b32 v7, s60, v7')
        e('v_add_u32 v15, 32768, v7')
        for i in range(4): e(f'v_mov_b32 v{48+i}, 0x3f803f80')
        self.wd_setup()
        tokA = tokB = None
        for ls in range(9):
            if ls < 8: vm.wait(e, tok[ls])
            if ls == 8: e('s_waitcnt lgkmcnt(0)')
            e('s_barrier')
            if ls in (0, 2, 4, 6): self.stamp(1 + ls // 2)
            if ls == 7: self.stamp(11)
            if ls == 8: self.stamp(13)
            if ls == 2:
                e('v_mov_b32 v9, 0')
                e('buffer_load_dwordx2 v[54:55], v9, s[56:59], 0 offen sc1'); tokN = vm.issue()
            if 0 <= ls <= 5: tok[ls + 2] = stage(ls + 2)
            if ls < 4:
                L = e.newlabel('NOCS')
                e(f's_cmp_lg_u32 s39, {ls}\ns_cbranch_scc1 {L}')
                e(f'v_add_u32 v9, {SLOT[ls % 3]}, v15')
                for ks in range(4):
                    for t in range(2):
                        e(f'ds_read_b64_tr_b16 v[{32+4*ks+2*t}:{33+4*ks+2*t}], v9 offset:{(16*ks+4*t)*128}')
                e('s_waitcnt lgkmcnt(0)')
                e('v_mfma_f32_32x32x16_bf16 v[16:31], v[48:51], v[32:35], 0')
                for ks in range(1, 4):
                    e(f'v_mfma_f32_32x32x16_bf16 v[16:31], v[48:51], v[{32+4*ks}:{35+4*ks}], v[16:31]')
                e('v_mov_b32 v52, v16')
                e(f'{L}:')
            if ls == 4:
                e('v_readfirstlane_b32 s70, v54\nv_readfirstlane_b32 s71, v55')
                e('s_cmp_lg_u32 s71, 0\ns_cbranch_scc1 L_HAVEN')
                self.get_nonce_blocking(54)
                e('L_HAVEN:')
                e(f's_xor_b32 s71, s70, {TAGX}')
                e('s_add_u32 s60, s36, s39\ns_and_b32 s60, s60, 7\ns_lshl_b32 s61, s35, 3\ns_add_u32 s60, s60, s61')
                e(f's_lshl_b32 s60, s60, 10\ns_lshl_b32 s61, s77, 8\ns_add_u32 s60, s60, s61\ns_add_u32 s60, s60, {WS_CS}')
                e('v_mov_b32 v53, s70')
                e('v_lshlrev_b32 v9, 3, v0')
                e('s_mov_b32 exec_hi, 0')
                e('buffer_store_dwordx2 v[52:53], v9, s[40:43], s60 offen sc1')
                e('s_mov_b64 exec, -1')
            if ls == 6:
                self.gran_loads(vm)
                tokG = vm.n
                for i in range(6): tokA = self.wd_dma(vm, i, 'A', i)
            if ls == 7:
                for i in range(6): tokB = self.wd_dma(vm, 6 + i, 'B', i)
                vm.wait(e, tokG)
                self.stamp(12)
                self.gran_check_build()
        self.wd_tail(vm, tokA, tokB)
        e('s_branch L_G2')

    def gran_issue(self):
        e = self.e
        e(f's_lshl_b32 s60, s34, 11\ns_lshl_b32 s61, s77, 9\ns_add_u32 s60, s60, s61\ns_add_u32 s60, s60, {WS_STATS}')
        e('v_lshlrev_b32 v9, 3, v0')
        e('buffer_load_dwordx2 v[16:17], v9, s[40:43], s60 offen sc1')
        e('v_and_b32 v8, 31, v0\nv_lshlrev_b32 v8, 3, v8\nv_lshrrev_b32 v7, 5, v0\nv_lshl_add_u32 v7, v7, 10, v8')
        e(f's_lshl_b32 s60, s35, 13\ns_lshl_b32 s61, s77, 8\ns_add_u32 s60, s60, s61\ns_add_u32 s60, s60, {WS_CS}')
        e('s_add_u32 s61, s60, 4096')
        e('buffer_load_dwordx2 v[18:19], v7, s[40:43], s60 offen sc1')
        e('buffer_load_dwordx2 v[20:21], v7, s[40:43], s60 offen offset:2048 sc1')
        e('buffer_load_dwordx2 v[22:23], v7, s[40:43], s61 offen sc1')
        e('buffer_load_dwordx2 v[24:25], v7, s[40:43], s61 offen offset:2048 sc1')
        e(f's_mov_b32 s60, {WS_FKV}')
        e('buffer_load_dwordx2 v[26:27], v8, s[40:43], s60 offen sc1')

    def gran_loads(self, vm):
        self.gran_issue(); vm.issue(6)

    def gran_check_build(self):
        e = self.e
        L = e.newlabel('GR'); D = e.newlabel('GRD')
        e(f's_mov_b32 s72, {POLL_LIMIT}')
        e(f'{L}:')
        e('v_cmp_ne_u32 vcc, s70, v17')
        for r in (19, 21, 23, 25):
            e(f'v_cmp_ne_u32 s[60:61], s70, v{r}')
            e('s_or_b64 vcc, vcc, s[60:61]')
        e('v_cmp_ne_u64 s[60:61], s[70:71], v[26:27]')
        e('s_or_b64 vcc, vcc, s[60:61]')
        e(f's_cbranch_scc0 {D}')
        e('s_sleep 2')
        self.gran_issue()
        e('s_waitcnt vmcnt(0)')
        e('s_sub_u32 s72, s72, 1\ns_cmp_lg_u32 s72, 0')
        e(f's_cbranch_scc1 {L}')
        e(f'{D}:')
        e('v_add_f32 v18, v18, v20\nv_add_f32 v22, v22, v24\nv_add_f32 v18, v18, v22')
        e('v_mov_b32 v19, v18')
        e('v_permlane32_swap_b32 v18, v19')
        e('v_add_f32 v18, v18, v19')
        e('v_cvt_pk_bf16_f32 v19, v18, v18')
        e('v_lshlrev_b32 v20, 16, v19')
        e('v_sub_f32 v20, v18, v20')
        e('v_cvt_pk_bf16_f32 v28, v18, v20')
        e('v_mov_b32 v29, 0\nv_mov_b32 v30, 0\nv_mov_b32 v31, 0')
        e('v_cmp_gt_u32 vcc, 32, v0')
        e('v_cndmask_b32 v28, v29, v28, vcc')
        e('v_lshlrev_b32 v7, 4, v0')
        e('s_lshl_b32 s60, s77, 10')
        e('v_add_u32 v8, s60, v7')
        e(f'ds_write_b128 v8, v[28:31] offset:{L_CSF}')
        e('v_and_b32 v20, 0xffff, v16')
        e('v_xor_b32 v20, 0x8000, v20')
        e('v_lshl_or_b32 v32, v20, 16, v20')
        e('v_mov_b32 v33, 0\nv_mov_b32 v34, 0\nv_mov_b32 v35, 0\nv_mov_b32 v36, 0')
        e('v_and_b32 v8, 31, v0\nv_lshlrev_b32 v8, 4, v8\nv_lshrrev_b32 v7, 5, v0\nv_lshl_add_u32 v8, v7, 10, v8')
        e('s_lshl_b32 s60, s77, 11')
        e('v_add_u32 v8, s60, v8')
        e(f'ds_write_b128 v8, v[32:35] offset:{L_MF}')
        e('v_mov_b32 v37, 0')
        e(f'ds_write_b128 v8, v[34:37] offset:{L_MF+512}')
        e('v_and_b32 v20, 0xffff0000, v16')
        e('v_lshlrev_b32 v8, 2, v0\ns_lshl_b32 s60, s77, 8\nv_add_u32 v8, s60, v8')
        e(f'ds_write_b32 v8, v20 offset:{L_RS}')
        e('v_mov_b32 v20, s70')
        e(f'ds_write_b32 v33, v20 offset:{L_NONCE}')

    def g2(self):
        e = self.e
        e('L_G2:')
        e('; ---- GEMM2 ----')
        ACC = 16; W = self.WD0; H = 208; LW = 240
        for i in range(64): e(f'v_mov_b32 v{ACC+i}, 0')
        self.stamp(5)
        e('s_barrier')
        self.stamp(6)
        e('v_min_u32 v4, 6, v0\nv_lshlrev_b32 v4, 3, v4')
        e(f's_lshl_b32 s61, s37, 2\ns_add_u32 s61, s61, s77\ns_lshl_b32 s61, s61, 7\ns_add_u32 s61, s61, {WS_FH}')
        e(f's_mul_i32 s62, s37, 224\ns_mul_i32 s63, s77, 28\ns_add_u32 s62, s62, s63\ns_lshl_b32 s62, s62, 10\ns_add_u32 s62, s62, {WS_HS}')
        e(f's_add_u32 s63, s62, {112*1024}')
        e('v_lshlrev_b32 v8, 4, v0')
        self.poll64(4, 's61', 6, sleep=1)
        self.stamp(7)
        vm = VM()
        def hload(ks):
            s = ks % 4
            if ks and ks % 4 == 0:
                e('s_add_u32 s62, s62, 4096\ns_add_u32 s63, s63, 4096')
            for tt in range(2):
                d = H + s * 8 + tt * 4
                e(f'buffer_load_dwordx4 v[{d}:{d+3}], v8, s[40:43], s{62+tt} offen offset:{(ks%4)*1024} sc1')
            return vm.issue(2)
        tok = {}
        for ks in range(4): tok[ks] = hload(ks)
        def res(ks):
            if ks < 18: return ('A', ks - 12)
            if ks < 24: return ('B', ks - 18)
            return ('A', ks - 24)
        for ks in range(28):
            if 16 <= ks + 1 < 28:
                rg, pos = res(ks + 1)
                pre = self.wd_read(LW + 8 * ((ks + 1) & 1), rg, pos)
            else: pre = []
            vm.wait(e, tok[ks])
            if ks >= 16: e('s_waitcnt lgkmcnt(0)')
            wd = W + 8 * ks if ks < 16 else LW + 8 * (ks & 1)
            hh = H + (ks % 4) * 8
            k = 0
            for tt in range(2):
                for ct in range(2):
                    a = ACC + (ct * 2 + tt) * 16
                    e(f'v_mfma_f32_32x32x16_bf16 v[{a}:{a+15}], v[{wd+4*ct}:{wd+4*ct+3}], v[{hh+4*tt}:{hh+4*tt+3}], v[{a}:{a+15}]')
                    if k < len(pre): e(pre[k]); k += 1
            if ks + 4 < 28: tok[ks + 4] = hload(ks + 4)
        self.stamp(8)
        e('v_and_b32 v3, 31, v0\nv_lshrrev_b32 v4, 5, v0\nv_and_b32 v5, 7, v0\nv_xor_b32 v4, v4, v5\nv_lshlrev_b32 v4, 4, v4\nv_lshl_add_u32 v4, v3, 8, v4')
        e(f's_add_u32 s60, s79, 65536')
        e('v_add_u32 v4, s60, v4')
        for q in range(1, 4): e(f'v_xor_b32 v{4+q}, {q*32}, v4')
        for ct in range(2):
            for tt in range(2):
                a = ACC + (ct * 2 + tt) * 16
                for q in range(4):
                    e(f'ds_write_b128 v{4+q}, v[{a+4*q}:{a+4*q+3}] offset:{tt*49152 + ct*128}')
        e('s_waitcnt lgkmcnt(0)')
        self.stamp(10)
        e('s_barrier')
        self.dump_stamps()
        e('s_endpgm')

    def spare(self):
        e = self.e
        e('L_SPARE:')
        self.srd(48, 6, 2097152)
        self.srd(52, 8, 2097152)
        self.srd(56, 10, 4096)
        e('s_sub_u32 s62, s2, 224')
        e('s_lshl_b32 s63, s62, 6\ns_lshl_b32 s60, s30, 3\ns_add_u32 s63, s63, s60')
        e('s_lshl_b32 s64, s63, 10')
        e('s_add_u32 s65, s64, 4096')
        e('v_lshlrev_b32 v8, 4, v0')
        Q = 16; K = 48; V = 92; SH = 124
        for j in range(8):
            e(f'buffer_load_dwordx4 v[{Q+4*j}:{Q+4*j+3}], v8, s[44:47], s{64 + j//4} offen offset:{(j%4)*1024}')
        e('v_lshlrev_b32 v9, 6, v0')
        for j in range(4):
            e(f'buffer_load_dwordx4 v[{SH+4*j}:{SH+4*j+3}], v9, s[56:59], 0 offen offset:{j*16}')
        for j in range(3):
            e(f's_sub_u32 s60, s64, {(3-j)*1024}')
            e(f'v_add_u32 v{10+j}, s60, v8')
            e(f'buffer_load_dwordx4 v[{K+4*j}:{K+4*j+3}], v{10+j}, s[48:51], 0 offen')
        for j in range(8):
            e(f'buffer_load_dwordx4 v[{K+12+4*j}:{K+12+4*j+3}], v8, s[48:51], s{64 + j//4} offen offset:{(j%4)*1024}')
        for j in range(8):
            e(f'buffer_load_dwordx4 v[{V+4*j}:{V+4*j+3}], v8, s[52:55], s{64 + j//4} offen offset:{(j%4)*1024}')
        self.srd(56, 26, 256)
        e('s_waitcnt vmcnt(23)')
        self.stamp(1)
        U = 140; S = 204
        for j in range(8):
            for d in range(4):
                e(f'v_lshlrev_b32 v{U+8*j+2*d}, 16, v{Q+4*j+d}')
                e(f'v_and_b32 v{U+8*j+2*d+1}, 0xffff0000, v{Q+4*j+d}')
        pr = lambda x: f'v[{x}:{x+1}]'
        def allreduce(regs):
            for mod in ('quad_perm:[1,0,3,2]', 'quad_perm:[2,3,0,1]', 'row_half_mirror', 'row_mirror'):
                for r in regs:
                    e(f'v_add_f32_dpp v{r}, v{r}, v{r} {mod} row_mask:0xf bank_mask:0xf')
            for sw in ('v_permlane16_swap_b32', 'v_permlane32_swap_b32'):
                for r in regs: e(f'v_mov_b32 v{r+8}, v{r}')
                for r in regs: e(f'{sw} v{r}, v{r+8}')
                for r in regs: e(f'v_add_f32 v{r}, v{r}, v{r+8}')
        T = 220
        for j in range(8):
            u = U + 8 * j
            e(f'v_pk_add_f32 {pr(T)}, {pr(u)}, {pr(u+2)}')
            e(f'v_pk_add_f32 {pr(T+2)}, {pr(u+4)}, {pr(u+6)}')
            e(f'v_pk_add_f32 {pr(T)}, {pr(T)}, {pr(T+2)}')
            e(f'v_add_f32 v{S+j}, v{T}, v{T+1}')
        allreduce([S + j for j in range(8)])
        M = 224
        for j in range(8): e(f'v_mul_f32 v{M+j}, {f2u(1/512):#x}, v{S+j}')
        for j in range(8):
            u = U + 8 * j
            for i in range(8): e(f'v_sub_f32 v{u+i}, v{u+i}, v{M+j}')
            e(f'v_pk_mul_f32 {pr(T)}, {pr(u)}, {pr(u)}')
            for i in (2, 4, 6): e(f'v_pk_fma_f32 {pr(T)}, {pr(u+i)}, {pr(u+i)}, {pr(T)}')
            e(f'v_add_f32 v{S+j}, v{T}, v{T+1}')
        allreduce([S + j for j in range(8)])
        e('v_and_b32 v1, 7, v0')
        e(f'v_mov_b32 v232, v{M}\nv_mov_b32 v233, v{S}')
        for j in range(1, 8):
            e(f'v_cmp_eq_u32 vcc, {j}, v1')
            e(f'v_cndmask_b32 v232, v232, v{M+j}, vcc')
            e(f'v_cndmask_b32 v233, v233, v{S+j}, vcc')
        e(f'v_mul_f32 v233, {f2u(1/512):#x}, v233')
        e('v_cvt_pk_bf16_f32 v233, v233, v233\nv_lshlrev_b32 v233, 16, v233')
        e(f'v_add_f32 v233, {f2u(1e-5):#x}, v233')
        e('v_cvt_pk_bf16_f32 v233, v233, v233\nv_lshlrev_b32 v233, 16, v233')
        e('v_sqrt_f32 v233, v233')
        e('v_cvt_pk_bf16_f32 v234, v232, v233')
        self.get_nonce_blocking(236)
        e('v_mov_b32 v235, s70')
        e('v_lshlrev_b32 v1, 3, v0')
        e(f's_lshl_b32 s60, s63, 3\ns_add_u32 s60, s60, {WS_STATS}')
        e('s_mov_b64 exec, 0xff')
        e('buffer_store_dwordx2 v[234:235], v1, s[40:43], s60 offen sc1')
        e('s_mov_b64 exec, -1')
        self.stamp(2)
        KU = 140; VU = 162; WU = 178; R = 186; O = 204
        e('s_sub_u32 s60, 7, s30')
        e('v_and_b32 v1, 7, v0\nv_xor_b32 v1, s60, v1\nv_lshlrev_b32 v1, 4, v1\nv_lshl_add_u32 v1, v0, 10, v1')
        for d in range(4):
            for j in range(11):
                e(f'v_lshlrev_b32 v{KU+2*j}, 16, v{K+4*j+d}')
                e(f'v_and_b32 v{KU+2*j+1}, 0xffff0000, v{K+4*j+d}')
            for j in range(8):
                e(f'v_lshlrev_b32 v{VU+2*j}, 16, v{V+4*j+d}')
                e(f'v_and_b32 v{VU+2*j+1}, 0xffff0000, v{V+4*j+d}')
            for cc in range(2):
                s = SH + 4 * d + 2 * cc
                e(f'v_lshlrev_b32 v{WU+0+cc}, 16, v{s}')
                e(f'v_and_b32 v{WU+2+cc}, 0xffff0000, v{s}')
                e(f'v_lshlrev_b32 v{WU+4+cc}, 16, v{s+1}')
                e(f'v_and_b32 v{WU+6+cc}, 0xffff0000, v{s+1}')
            for j in range(8): e(f'v_pk_mul_f32 {pr(R+2*j)}, {pr(KU+2*j)}, {pr(WU+6)}')
            for tap in (2, 1, 0):
                for j in range(8): e(f'v_pk_fma_f32 {pr(R+2*j)}, {pr(KU+2*(j+3-tap))}, {pr(WU+2*tap)}, {pr(R+2*j)}')
            for j in range(8): e(f'v_pk_mul_f32 {pr(R+2*j)}, {pr(R+2*j)}, {pr(VU+2*j)}')
            o = O + (d & 1) * 8
            for cc in range(2):
                for q in range(4):
                    e(f'v_cvt_pk_bf16_f32 v{o+4*cc+q}, v{R+2*(7-2*q)+cc}, v{R+2*(6-2*q)+cc}')
                e(f'ds_write_b128 v1, v[{o+4*cc}:{o+4*cc+3}] offset:{(2*d+cc)*128}')
        e('s_waitcnt lgkmcnt(0)')
        e('s_barrier')
        e('s_lshl_b32 s60, s30, 13')
        e('v_add_u32 v1, s60, v8')
        for i in range(8): e(f'ds_read_b128 v[{16+4*i}:{19+4*i}], v1 offset:{i*1024}')
        e('v_lshrrev_b32 v2, 3, v0\nv_lshlrev_b32 v2, 12, v2\nv_and_b32 v3, 7, v0\nv_lshl_add_u32 v2, v3, 4, v2')
        e(f's_lshl_b32 s60, s30, 18\ns_lshl_b32 s61, s62, 7\ns_sub_u32 s60, s60, s61\ns_add_u32 s60, s60, {WS_KVT + 3968}')
        for i in range(8):
            e(f'v_xor_b32 v3, {i*16}, v2')
            e(f's_waitcnt lgkmcnt({7-i})')
            e(f'buffer_store_dwordx4 v[{16+4*i}:{19+4*i}], v3, s[40:43], s60 offen sc1')
            e('s_add_u32 s60, s60, 32768')
        e('s_waitcnt vmcnt(0)')
        e('s_barrier')
        e('s_cmp_lg_u32 s30, 0\ns_cbranch_scc1 L_SPNF')
        e(f's_lshl_b32 s60, s62, 3\ns_add_u32 s60, s60, {WS_FKV}')
        self.store_flag('s60', 4)
        e('L_SPNF:')
        self.stamp(3)
        e('s_cmp_ge_u32 s30, 4\ns_cbranch_scc1 L_SPH')
        e('v_and_b32 v4, 31, v0\nv_lshlrev_b32 v4, 3, v4')
        e(f's_mov_b32 s61, {WS_FKV}')
        self.poll64(4, 's61', 6, sleep=4)
        self.conv_loads()
        e('s_waitcnt vmcnt(0)')
        e('s_branch L_CONV')
        e('L_SPH:')
        vm = VM()
        self.wd_setup()
        for i in range(6): tokA = self.wd_dma(vm, i, 'A', i)
        for i in range(6): tokB = self.wd_dma(vm, 6 + i, 'B', i)
        self.wd_tail(vm, tokA, tokB)
        e('s_branch L_G2')

    def build(self):
        self.prologue()
        self.g1_mfma()
        self.conv()
        self.g1_helper()
        self.g2()
        self.spare()
        self.e('L_END:')
        body = self.e.text()
        hdr = open('parallel_sum__ssm_conv_h3__glu_gated_geglu__prompt.s.ref').read().split('; Override launch')[0]
        s = hdr + f'; @launch grid=(256,1,1) block=(512,1,1) lds={LDS_TOTAL}\n'
        s += f'.amdgcn_target "amdgcn-amd-amdhsa--gfx950"\n.text\n.globl {NAME}\n.p2align 8\n.type {NAME},@function\n{NAME}:\n'
        s += body + '    s_endpgm\n'
        s += f'''.section .rodata,"a"
.p2align 6
.amdhsa_kernel {NAME}
  .amdhsa_next_free_vgpr 256
  .amdhsa_next_free_sgpr 102
  .amdhsa_accum_offset 256
  .amdhsa_group_segment_fixed_size 0
  .amdhsa_kernarg_size 104
  .amdhsa_user_sgpr_count 2
  .amdhsa_user_sgpr_kernarg_segment_ptr 1
  .amdhsa_system_sgpr_workgroup_id_x 1
.end_amdhsa_kernel
'''
        return s

if __name__ == '__main__':
    out = sys.argv[1]
    stamps = 'stamps' in sys.argv[2:]
    open(out, 'w').write(Gen(stamps=stamps, opt=set(sys.argv[2:])).build())
```

```python
import sys, struct
from emit import Em

NAME = 'parallel_sum__ssm_conv_h3__glu_gated_geglu__prompt_kernel'

WS_EPOCH = 0
WS_STATS = 0x10000
WS_CS = 0x20000
WS_FKV = 0x80000
WS_FH = 0xA0000
WS_FY = 0xC0000
WS_KVT = 0x100000
WS_YS = 0x300000
WS_HS = 0x500000
WS_DBG = 0xD00000
WS_SIZE = 0xE00000

SLOT = [65536, 16384, 114688]
L_CS = 0
L_ST = 1024
L_NONCE = 2048
L_CNT = 2176
L_TRK = 4096
L_KVI = 4096
XB = 4096
IMG = 39424
HO_OFF = 4160
KV_OFF = 8448
CH_SZ = 13056
LDS_TOTAL = 163840

def f2u(x):
    return struct.unpack('<I', struct.pack('<f', x))[0]

K1C = -2.0 * 1.4426950408889634 * 0.7978845608028654
K2C = K1C * 0.044715
TAGX = 0x5bd1e995
POLL_LIMIT = 100000
pr = lambda x: f'v[{x}:{x+1}]'

class VM:
    def __init__(self): self.n = 0
    def issue(self, k=1):
        self.n += k; return self.n
    def wait(self, e, tok):
        c = self.n - tok
        assert 0 <= c <= 63, c
        e(f's_waitcnt vmcnt({c})')

class Gen:
    def __init__(self, stamps=False, opt=None):
        self.e = Em()
        self.stamps = stamps
        self.opt = opt or set()

    def o(self, name, default):
        for x in self.opt:
            if x.startswith(name + '='): return int(x.split('=')[1])
        return default

    def srd(self, d, ptr, size):
        e = self.e
        e(f's_mov_b32 s{d}, s{ptr}\ns_mov_b32 s{d+1}, s{ptr+1}\ns_mov_b32 s{d+2}, {size}\ns_mov_b32 s{d+3}, 0x20000')

    def stamp(self, k):
        if self.stamps:
            ins = 's_memrealtime' if 'rt' in self.opt else 's_memtime'
            self.e(f'{ins} s[98:99]\ns_waitcnt lgkmcnt(0)\ns_mov_b32 s{80+k}, s98')

    def kwait(self):
        e = self.e
        e('s_waitcnt lgkmcnt(0)')
        if self.stamps:
            e(('s_mov_b32 s80, s96' if 'rt' in self.opt else 's_mov_b32 s80, s98') + '\ns_mov_b32 s94, s96')
            for k in range(1, 14): e(f's_mov_b32 s{80+k}, 0')
        self.srd(44, 4, 2097152)
        self.srd(40, 28, WS_SIZE)

    def dump_stamps(self):
        if not self.stamps: return
        e = self.e
        e('s_waitcnt vmcnt(0) lgkmcnt(0)')
        self.stamp(15)
        e('s_memrealtime s[98:99]\ns_waitcnt lgkmcnt(0)\ns_mov_b32 s93, s98')
        e('s_lshl_b32 s60, s2, 3\ns_add_u32 s60, s60, s30\ns_lshl_b32 s60, s60, 6\ns_add_u32 s60, s60, %d' % WS_DBG)
        e('v_mov_b32 v1, 0')
        for g in range(4):
            for i in range(4):
                e(f'v_mov_b32 v{4+i}, s{80+4*g+i}')
            e(f'buffer_store_dwordx4 v[4:7], v1, s[40:43], s60 offen offset:{16*g}')
        e('s_waitcnt vmcnt(0)')

    def poll64(self, vaddr, soff, t, sleep=1):
        e = self.e
        L = e.newlabel('POLL'); D = e.newlabel('POLLD')
        e(f's_mov_b32 s72, {POLL_LIMIT}')
        e(f'{L}:')
        e(f'buffer_load_dwordx2 v[{t}:{t+1}], v{vaddr}, s[40:43], {soff} offen sc1')
        e('s_waitcnt vmcnt(0)')
        e(f'v_cmp_ne_u64 vcc, s[70:71], v[{t}:{t+1}]')
        e(f's_cbranch_vccz {D}')
        e(f's_sleep {sleep}')
        e('s_sub_u32 s72, s72, 1')
        e('s_cmp_lg_u32 s72, 0')
        e(f's_cbranch_scc1 {L}')
        e(f'{D}:')

    def get_nonce_blocking(self, t):
        e = self.e
        L = e.newlabel('NON'); D = e.newlabel('NOND')
        e(f's_mov_b32 s72, {POLL_LIMIT}')
        e(f'v_mov_b32 v{t+2}, 0')
        e(f'{L}:')
        e(f'buffer_load_dwordx2 v[{t}:{t+1}], v{t+2}, s[56:59], 0 offen sc1')
        e('s_waitcnt vmcnt(0)')
        e(f'v_readfirstlane_b32 s70, v{t}')
        e(f'v_readfirstlane_b32 s71, v{t+1}')
        e('s_cmp_lg_u32 s71, 0')
        e(f's_cbranch_scc1 {D}')
        e('s_sleep 4')
        e('s_sub_u32 s72, s72, 1')
        e('s_cmp_lg_u32 s72, 0')
        e(f's_cbranch_scc1 {L}')
        e(f'{D}:')
        e(f's_xor_b32 s71, s70, {TAGX}')

    def store_flag(self, soff_reg, t):
        e = self.e
        e(f'v_mov_b32 v{t}, s70\nv_mov_b32 v{t+1}, s71\nv_mov_b32 v{t+2}, 0')
        e('s_mov_b64 exec, 1')
        e(f'buffer_store_dwordx2 v[{t}:{t+1}], v{t+2}, s[40:43], {soff_reg} offen sc1')
        e('s_mov_b64 exec, -1')

    def lds_signal(self, k, vz, vt):
        e = self.e
        e(f'v_mov_b32 v{vt}, 1')
        e('s_mov_b64 exec, 1')
        e(f'ds_add_u32 v{vz}, v{vt} offset:{L_CNT + 4*k}')
        e('s_mov_b64 exec, -1')

    def lds_wait(self, k, n, vz, vt, sleep=0):
        e = self.e
        L = e.newlabel('SB')
        e(f's_mov_b32 s72, {POLL_LIMIT*8}')
        e(f'{L}:')
        if sleep: e(f's_sleep {sleep}')
        e(f'ds_read_b32 v{vt}, v{vz} offset:{L_CNT + 4*k}')
        e('s_sub_u32 s72, s72, 1')
        e('s_waitcnt lgkmcnt(0)')
        e(f'v_readfirstlane_b32 s60, v{vt}')
        e('s_cmp_eq_u32 s72, 0')
        e(f's_cbranch_scc1 {L}_D')
        e(f's_cmp_lt_u32 s60, {n}')
        e(f's_cbranch_scc1 {L}')
        e(f'{L}_D:')

    def prologue(self):
        e = self.e
        e('s_load_dwordx16 s[4:19], s[0:1], 0')
        e('s_load_dwordx8 s[20:27], s[0:1], 64')
        e('s_load_dwordx2 s[28:29], s[0:1], 96')
        if self.stamps:
            e('s_memtime s[98:99]\ns_memrealtime s[96:97]')
        e('s_cmp_ge_u32 s2, 256')
        e('s_cbranch_scc1 L_END')
        e('v_lshrrev_b32 v1, 6, v0')
        e('v_and_b32 v0, 63, v0')
        e('v_readfirstlane_b32 s30, v1')
        e('s_and_b32 s31, s2, 7')
        e('s_lshr_b32 s32, s2, 3')
        e('s_cmp_lg_u32 s30, 0')
        e('s_cbranch_scc1 L_NOPF')
        e('s_getpc_b64 s[60:61]')
        e('L_PC:')
        e('v_lshlrev_b32 v1, 5, v0')
        e('v_add_u32 v1, s32, v1')
        e('v_lshlrev_b32 v1, 7, v1')
        e('v_cmp_gt_u32 vcc, L_END-L_PC, v1')
        e('s_and_saveexec_b64 s[62:63], vcc')
        e('s_cbranch_execz L_PFX')
        e('global_load_dword v79, v1, s[60:61]')
        e('L_PFX:')
        e('s_mov_b64 exec, s[62:63]')
        e('L_NOPF:')
        e('s_and_b32 s39, s32, 3')
        e('s_lshr_b32 s38, s32, 2')
        e('s_lshl_b32 s37, s31, 2')
        e('s_add_u32 s37, s37, s39')
        e('s_and_b32 s60, s31, 4')
        e('s_and_b32 s61, s31, 3')
        e('s_add_u32 s34, s60, s39')
        e('s_mul_i32 s35, s61, 7')
        e('s_add_u32 s35, s35, s38')
        e('s_lshl_b32 s36, s61, 1')
        e('s_add_u32 s36, s36, s60')
        e('s_and_b32 s36, s36, 7')
        e('s_sub_u32 s77, s30, 4')
        if 'wdtest' in self.opt:
            e('s_cmp_lt_u32 s30, 4\ns_cbranch_scc1 L_END')
            self.kwait()
            self.wd_setup()
            for rep in range(3):
                self.stamp(1 + 2 * rep)
                vm = VM(); wtok = {}
                for i in range(4): wtok[i] = self.wd_dma(vm, i)
                self.wd_tail(vm, wtok)
                e('s_waitcnt vmcnt(0) lgkmcnt(0)')
                self.stamp(2 + 2 * rep)
            self.dump_stamps()
            e('s_endpgm')
        e('s_cmp_ge_u32 s32, 28')
        e('s_cbranch_scc1 L_SPARE')
        e('s_cmp_lt_u32 s30, 4')
        e('s_cbranch_scc1 L_MFMA')

    def w_tr_addr(self, dst):
        e = self.e
        e('v_lshrrev_b32 v2, 5, v0')
        e('v_bfe_u32 v3, v0, 2, 2')
        e('v_bfe_u32 v4, v0, 1, 1')
        e('v_and_b32 v5, 1, v0')
        e('v_bfe_u32 v6, v0, 4, 1')
        e('v_and_b32 v7, 2, v3')
        e('v_lshl_add_u32 v7, v4, 2, v7')
        e('v_xor_b32 v7, v7, v5')
        e('v_lshlrev_b32 v7, 4, v7')
        e('v_lshl_add_u32 v7, v6, 3, v7')
        e('v_lshl_add_u32 v3, v2, 3, v3')
        e('v_lshl_add_u32 v7, v3, 7, v7')
        e(f'v_lshl_add_u32 v{dst}, v4, 13, v7')

    def g1_mfma(self):
        e = self.e
        ACC = 128; FR = 80
        XA = [16, 24]; WA = [20, 28]
        e('L_MFMA:')
        e('v_and_b32 v1, 31, v0')
        e('v_lshrrev_b32 v2, 5, v0')
        e('v_bfe_u32 v3, v1, 1, 3')
        e('v_xor_b32 v3, v3, v2')
        e('v_lshlrev_b32 v3, 4, v3')
        e('v_lshl_add_u32 v3, v1, 7, v3')
        e('s_lshl_b32 s60, s30, 13')
        e('s_add_u32 s60, s60, 16384')
        e('v_add_u32 v16, s60, v3')
        for ks in range(1, 4): e(f'v_xor_b32 v{16+ks}, {ks*32}, v16')
        self.w_tr_addr(20)
        e(f'v_add_u32 v20, {16384+32768}, v20')
        for j in range(1, 4): e(f'v_xor_b32 v{20+j}, {j*32}, v20')
        for i in range(8): e(f'v_add_u32 v{24+i}, {114688-16384}, v{16+i}')
        EX = 48
        for i in range(24):
            if i % 4: e(f'v_mov_b32 v{EX+i}, 0')
        e('v_lshlrev_b32 v8, 4, v0')
        e('v_lshlrev_b32 v9, 2, v0')
        e('v_lshlrev_b32 v10, 2, v1')
        e('s_lshl_b32 s60, s30, 8')
        e('v_add_u32 v10, s60, v10')
        e('v_mov_b32 v11, 0')
        self.kwait()
        e('s_cmp_lg_u32 s2, 0\ns_cbranch_scc1 L_NOPROD\ns_cmp_lg_u32 s30, 1\ns_cbranch_scc1 L_NOPROD')
        e('buffer_load_dword v2, v11, s[40:43], 0 offen sc1')
        self.srd(56, 26, 256)
        e('s_waitcnt vmcnt(0)')
        e('v_add_u32 v2, 1, v2\nv_mov_b32 v3, 1')
        e('s_mov_b64 exec, 1')
        e('buffer_store_dwordx2 v[2:3], v11, s[56:59], 0 offen sc1')
        e('buffer_store_dword v2, v11, s[40:43], 0 offen sc1')
        e('s_mov_b64 exec, -1')
        e('L_NOPROD:')

        def frag(st, which):
            return FR + st * 24 + which * 4
        def reads(ls, ks, st):
            base = SLOT[ls % 3]
            s = 1 if base == 114688 else 0
            off = base - (114688 if s else 16384)
            def X(tt):
                d = frag(st, tt)
                return [f'ds_read_b128 v[{d}:{d+3}], v{XA[s]+ks} offset:{off + tt*4096}']
            def W(j):
                d = frag(st, 2 + j)
                return [f'ds_read_b64_tr_b16 v[{d+2*t}:{d+2*t+1}], v{WA[s]+j} offset:{off + (16*ks+4*t)*128}' for t in range(2)]
            return X(0) + W(0) + W(1) + X(1) + W(2) + W(3)
        extra = [f'ds_read_b32 v32, v10 offset:{L_ST}', f'ds_read_b32 v33, v10 offset:{L_ST+128}'] + \
                [f'ds_read_b32 v{EX+8+4*j}, v9 offset:{L_CS + j*256}' for j in range(4)] + [f'ds_read_b32 v34, v11 offset:{L_NONCE}']
        order = [(0, 0), (0, 1), (1, 0), (1, 1), (0, 2), (1, 2), (0, 3), (1, 3)]
        needn = [3, 5, 6, 6, 8, 8, 10, 10]
        def mfma(A, B, tt, j, first=False):
            a = ACC + (tt * 4 + j) * 16
            c = '0' if first else f'v[{a}:{a+15}]'
            return f'v_mfma_f32_32x32x16_bf16 v[{a}:{a+15}], v[{A}:{A+3}], v[{B}:{B+3}], {c}'
        self.stamp(1)
        e('s_barrier')
        self.stamp(2)
        for r in reads(0, 0, 0): e(r)
        steps = [(ls, ks) for ls in range(8) for ks in range(4)]
        for si, (ls, ks) in enumerate(steps):
            st = si & 1
            if si + 1 < len(steps):
                nls, nks = steps[si + 1]
                nxt = reads(nls, nks, st ^ 1)
            else:
                nxt = extra
            boundary = (ks == 3)
            issued = 0
            done_cur = 0
            plan = [0, 0, 2, 2, 2, 2, 2, 0] if boundary else [2, 2, 2, 2, 1, 1, 0, 0]
            for mi, (tt, j) in enumerate(order):
                if needn[mi] > done_cur:
                    e(f's_waitcnt lgkmcnt({10 - needn[mi] + issued})')
                    done_cur = needn[mi]
                e(mfma(frag(st, 2 + j), frag(st, tt), tt, j, first=(si == 0)))
                if boundary and mi == 1:
                    if ls >= 6: e(f'ds_read_b32 v35, v11 offset:{L_CNT + 4*(3 if ls == 6 else 7)}')
                    e('s_waitcnt lgkmcnt(0)')
                    done_cur = 10
                    if ls < 6: e('s_barrier')
                    else:
                        self.lds_signal(4 if ls == 6 else 5, 11, 34)
                        Lok = e.newlabel('OK')
                        e('v_readfirstlane_b32 s60, v35')
                        e('s_cmp_ge_u32 s60, 4')
                        e(f's_cbranch_scc1 {Lok}')
                        self.lds_wait(3 if ls == 6 else 7, 4, 11, 35)
                        e(f'{Lok}:')
                        issued_extra = 1
                for _ in range(plan[mi]):
                    if issued < len(nxt):
                        e(nxt[issued]); issued += 1
            assert issued == len(nxt)
        e('s_waitcnt lgkmcnt(0)')
        for tt in range(2):
            e(f'v_and_b32 v35, 0xffff, v{32+tt}')
            e('v_xor_b32 v35, 0x8000, v35')
            e(f'v_lshl_or_b32 v{EX+4*tt}, v35, 16, v35')
            e(f'v_and_b32 v{32+tt}, 0xffff0000, v{32+tt}')
        e('v_readfirstlane_b32 s70, v34')
        for (tt, j) in [(0, 0), (0, 1), (0, 2), (0, 3), (1, 0), (1, 1), (1, 2), (1, 3)]:
            e(mfma(EX + 8 + 4 * j, EX + 4 * tt, tt, j))
        self.stamp(3)
        e(f's_xor_b32 s71, s70, {TAGX}')
        for tt in range(2):
            b = 36 + 6 * tt
            e(f'v_rcp_f32 v35, v{32+tt}')
            e(f'v_mul_f32 v{b+4}, v{32+tt}, v{32+tt}')
            e(f'v_mul_f32 v{b}, {f2u(K1C):#x}, v35')
            e(f'v_mul_f32 v{b+2}, v35, v35')
            e(f'v_mul_f32 v{b+2}, v{b+2}, v35')
            e(f'v_mul_f32 v{b+2}, {f2u(K2C):#x}, v{b+2}')
            e(f'v_mov_b32 v{b+1}, v{b}')
            e(f'v_mov_b32 v{b+5}, v{b+4}')
            e(f'v_mov_b32 v{b+3}, v{b+2}')
        e('s_lshl_b32 s64, s34, 3\ns_lshl_b32 s61, s30, 1\ns_add_u32 s64, s64, s61')
        e('s_mul_i32 s64, s64, 112\ns_lshl_b32 s61, s35, 2\ns_add_u32 s64, s64, s61\ns_lshl_b32 s64, s64, 10')
        e(f's_add_u32 s64, s64, {WS_HS}')
        e(f's_add_u32 s65, s64, {112*1024}')
        self.kvflag_addr()
        e('v_mov_b32 v72, 0\nv_mov_b32 v73, 0')
        for tt in range(2):
            b = 36 + 6 * tt
            for j in range(4):
                a = ACC + (tt * 4 + j) * 16
                T = 80 + ((tt * 4 + j) & 1) * 12
                P = [0, 2, 8, 10]
                for i, p in enumerate(P): e(f'v_pk_mul_f32 {pr(T+2*i)}, {pr(a+p)}, {pr(a+p)}')
                for i, p in enumerate(P): e(f'v_pk_fma_f32 {pr(T+2*i)}, {pr(T+2*i)}, {pr(b+2)}, {pr(b)}')
                for i, p in enumerate(P): e(f'v_pk_mul_f32 {pr(T+2*i)}, {pr(T+2*i)}, {pr(a+p)}')
                for i in range(8): e(f'v_exp_f32 v{T+i}, v{T+i}')
                for i, p in enumerate(P): e(f'v_pk_mul_f32 {pr(a+p)}, {pr(a+p)}, {pr(a+p+4)}')
                for i, p in enumerate(P): e(f'v_pk_fma_f32 {pr(T+2*i)}, {pr(T+2*i)}, {pr(b+4)}, {pr(b+4)}')
                for i in range(8): e(f'v_rcp_f32 v{T+i}, v{T+i}')
                for i, p in enumerate(P): e(f'v_pk_mul_f32 {pr(a+p)}, {pr(a+p)}, {pr(T+2*i)}')
                for i, p in enumerate(P): e(f'v_cvt_pk_bf16_f32 v{T+8+i}, v{a+p}, v{a+p+1}')
                hf = '' if 'hplain' in self.opt else ('nt' if 'hnt' in self.opt else ('sc0 sc1' if 'hsc01' in self.opt else 'sc1'))
                if 'nohst' not in self.opt: e(f'buffer_store_dwordx4 v[{T+8}:{T+11}], v8, s[40:43], s{64+tt} offen offset:{j*1024} {hf}')
                if tt * 4 + j == self.o('cvat', 0):
                    self.lds_wait(5, 4, 11, 35)
                    self.conv_loads_h()
                if tt * 4 + j == self.o('kfat', 5):
                    e('buffer_load_dwordx2 v[72:73], v74, s[40:43], s75 offen sc1')
        self.lds_signal(10, 11, 35)
        self.stamp(4)
        e('s_lshl_b32 s76, s34, 2\ns_add_u32 s76, s76, s30\ns_lshl_b32 s76, s76, 2\ns_and_b32 s61, s31, 3\ns_add_u32 s76, s76, s61')
        e(f's_lshl_b32 s76, s76, 3\ns_add_u32 s76, s76, s38\ns_lshl_b32 s76, s76, 7\ns_add_u32 s76, s76, {WS_FH}')
        e(f's_waitcnt vmcnt({7 - self.o("kfat", 5)})')
        e('v_cmp_ne_u64 vcc, s[70:71], v[72:73]')
        e('s_cbranch_vccnz L_KVSLOW')
        self.conv_loads_kv()
        e('s_waitcnt vmcnt(2)')
        self.store_flag('s76', 4)
        self.stamp(12)
        e('s_waitcnt vmcnt(1)')
        self.stamp(5)
        e('s_branch L_CONV')
        e('L_KVSLOW:')
        e('s_waitcnt vmcnt(0)')
        self.store_flag('s76', 4)
        self.stamp(12)
        e('L_KVPOLL:')
        self.poll64(74, 's75', 72, sleep=16)
        self.conv_loads_kv()
        e('s_waitcnt vmcnt(0)')
        self.stamp(5)

    def kvflag_addr(self):
        e = self.e
        e('v_and_b32 v74, 15, v0\nv_lshlrev_b32 v74, 5, v74')
        e(f's_lshr_b32 s75, s2, 5\ns_lshl_b32 s75, s75, 10\ns_and_b32 s60, s30, 1\ns_lshl_b32 s60, s60, 9\ns_sub_u32 s75, s75, s60\ns_add_u32 s75, s75, {WS_FKV + 512}')

    def conv_loads_h(self):
        e = self.e
        self.srd(48, 12, 2097152)
        self.srd(52, 14, 1024)
        e('s_lshr_b32 s62, s30, 1')
        e('s_and_b32 s63, s30, 1')
        e('s_lshl_b32 s78, s2, 1\ns_add_u32 s78, s78, s62')
        e(f's_mul_i32 s74, s62, {CH_SZ}\ns_add_u32 s74, s74, {IMG}')
        e('s_lshl_b32 s67, s78, 12\ns_lshl_b32 s61, s63, 1\ns_add_u32 s60, s67, s61')
        e(f's_mul_i32 s73, s63, {HO_OFF}\ns_add_u32 s73, s73, s74')
        e('s_add_u32 m0, s73, 32')
        for i in range(4):
            e(f'buffer_load_dwordx4 v8, s[48:51], s60 offen offset:{i*1024} lds')
        e('v_mov_b32 v12, 0')
        e('buffer_load_ushort v13, v12, s[48:51], s67 offen')
        e('s_lshl_b32 s67, s78, 1')
        e('buffer_load_ushort v14, v12, s[52:55], s67 offen')
        e('v_lshrrev_b32 v116, 3, v0')
        e('s_lshl_b32 s60, s30, 3')
        e('v_add_u32 v116, s60, v116')
        e('v_and_b32 v117, 7, v0')
        e('v_lshlrev_b32 v118, 10, v116')
        e('v_lshl_add_u32 v118, v117, 4, v118')
        e('s_lshl_b32 s68, s37, 16\ns_lshl_b32 s60, s38, 7\ns_add_u32 s68, s68, s60')
        e('s_add_u32 s69, s68, 32768')
        e('buffer_load_dwordx4 v[104:107], v118, s[44:47], s68 offen')
        e('buffer_load_dwordx4 v[108:111], v118, s[44:47], s69 offen')
        e('v_lshlrev_b32 v119, 3, v116')
        e(f's_lshl_b32 s79, s37, 9\ns_add_u32 s79, s79, {WS_STATS}')
        e('buffer_load_dwordx2 v[112:113], v119, s[40:43], s79 offen sc1')
        e('buffer_load_dwordx2 v[114:115], v119, s[40:43], s79 offen offset:256 sc1')

    def conv_loads_kv(self):
        e = self.e
        e('s_and_b32 s63, s30, 1')
        e(f's_lshl_b32 s60, s78, 12\ns_lshl_b32 s67, s63, 11\ns_add_u32 s60, s60, s67\ns_add_u32 s60, s60, {WS_KVT}')
        e(f's_add_u32 s67, s67, s74')
        e(f's_add_u32 m0, s67, {KV_OFF}')
        for i in range(2):
            e(f'buffer_load_dwordx4 v8, s[40:43], s60 offen offset:{i*1024} sc1 lds')

    def conv(self):
        e = self.e
        e('L_CONV:')
        e('; ---- conv ----')
        e('s_and_b32 s63, s30, 1')
        e('v_lshlrev_b32 v15, 16, v13')
        e('v_cmp_eq_u32 vcc, 7, v0')
        e('s_cmp_eq_u32 s63, 1')
        e('s_cselect_b64 vcc, vcc, 0')
        e('v_mov_b32 v12, 0')
        e('v_cndmask_b32 v15, v12, v15, vcc')
        e('v_lshlrev_b32 v16, 2, v0')
        e('v_add_u32 v16, s73, v16')
        e('s_mov_b64 exec, 0xff')
        e('ds_write_b32 v16, v15')
        e('s_mov_b64 exec, -1')
        e('v_lshlrev_b32 v16, 2, v0')
        e('s_lshl_b32 s60, s63, 8')
        e(f's_add_u32 s60, s60, {KV_OFF+4096}')
        e('s_add_u32 s60, s60, s74')
        e('v_add_u32 v16, s60, v16')
        e('ds_write_b32 v16, v12')
        e('s_waitcnt lgkmcnt(0)')
        self.lds_signal(0, 12, 16)
        ACC = 32; AF = [128, 160]; BF = [192, 224]
        e('v_and_b32 v1, 15, v0')
        e('v_lshrrev_b32 v2, 4, v0')
        e('v_add_u32 v3, 1, v1')
        e('v_lshrrev_b32 v3, 1, v3')
        e('v_lshl_add_u32 v3, v2, 2, v3')
        e('v_lshlrev_b32 v3, 2, v3')
        e('v_and_b32 v4, 1, v1')
        e('v_xor_b32 v4, 1, v4')
        e(f'v_mul_u32_u24 v4, {HO_OFF}, v4')
        e('v_add_u32 v3, v3, v4')
        e('s_lshl_b32 s60, s63, 8')
        e('s_add_u32 s60, s60, s74')
        e('v_add_u32 v20, s60, v3')
        for i in range(1, 4): e(f'v_add_u32 v{20+i}, {i*1024}, v20')
        e('v_lshlrev_b32 v3, 5, v1')
        e('v_lshlrev_b32 v4, 4, v2')
        e('v_sub_u32 v3, v4, v3')
        e(f's_add_u32 s60, s60, {KV_OFF+480}')
        e('v_add_u32 v24, s60, v3')
        e('v_lshlrev_b32 v3, 3, v2')
        e('v_add_u32 v3, v3, v1')
        e('v_sub_u32 v3, 15, v3')
        e('v_and_b32 v4, 1, v3')
        e('v_lshlrev_b32 v4, 4, v4')
        e('v_lshlrev_b32 v4, v4, v14')
        e('v_ashrrev_i32 v3, 1, v3')
        for d in range(4):
            e(f'v_cmp_eq_u32 vcc, {d}, v3')
            e(f'v_cndmask_b32 v{26+d}, v12, v4, vcc')
        self.lds_wait(0, 4, 12, 16)
        self.stamp(6)
        def rd(p, st):
            out = []
            for a in range(8):
                d = AF[st] + 4 * a
                o = (a & 1) * 128 + p * 16
                out.append(f'ds_read2_b32 v[{d}:{d+1}], v{20 + (a >> 1)} offset0:{o} offset1:{o+1}')
                out.append(f'ds_read2_b32 v[{d+2}:{d+3}], v{20 + (a >> 1)} offset0:{o+2} offset1:{o+3}')
                d = BF[st] + 4 * a
                out.append(f'ds_read_b128 v[{d}:{d+3}], v24 offset:{(7-a)*512 + p*64}')
            return out
        for r in rd(0, 0): e(r)
        for p in range(4):
            st = p & 1
            nxt = rd(p + 1, st ^ 1) if p < 3 else []
            e('s_waitcnt lgkmcnt(0)')
            k = 0
            for a in range(8):
                for b in range(8 - a):
                    g = a + b
                    c = '0' if (p == 0 and a == 0) else f'v[{ACC+4*g}:{ACC+4*g+3}]'
                    e(f'v_mfma_f32_16x16x32_bf16 v[{ACC+4*g}:{ACC+4*g+3}], v[{AF[st]+4*a}:{AF[st]+4*a+3}], v[{BF[st]+4*b}:{BF[st]+4*b+3}], {c}')
                    if k < len(nxt):
                        e(nxt[k]); k += 1
            if p == 0:
                e('s_cmp_lg_u32 s63, 0')
                e('s_cbranch_scc1 L_NOD')
                for b in range(8):
                    e(f'v_mfma_f32_16x16x32_bf16 v[{ACC+4*b}:{ACC+4*b+3}], v[26:29], v[{BF[st]+4*b}:{BF[st]+4*b+3}], v[{ACC+4*b}:{ACC+4*b+3}]')
                e('L_NOD:')
        self.stamp(7)
        e('v_lshlrev_b32 v8, 4, v0')
        e('s_lshl_b32 s60, s30, 13')
        e('v_add_u32 v9, s60, v8')
        for g in range(8):
            e(f'ds_write_b128 v9, v[{ACC+4*g}:{ACC+4*g+3}] offset:{XB + g*1024}')
        e('s_waitcnt lgkmcnt(0)')
        self.lds_signal(1, 12, 10)
        e('v_lshrrev_b32 v3, 2, v1')
        e('v_lshlrev_b32 v3, 16, v3')
        e('v_and_b32 v4, 3, v1')
        e('v_lshl_add_u32 v3, v4, 6, v3')
        e('v_lshl_add_u32 v3, v2, 4, v3')
        e(f's_lshl_b32 s64, s30, 19\ns_lshl_b32 s61, s2, 8\ns_add_u32 s64, s64, s61\ns_add_u32 s64, s64, {WS_YS}')
        e('s_add_u32 s65, s64, 0x40000')
        e('s_lshl_b32 s60, s30, 11')
        e('v_add_u32 v9, s60, v8')
        self.lds_wait(1, 4, 12, 10)
        for gg in range(2):
            for src in range(4):
                d = 128 + (gg * 4 + src) * 4
                e(f'ds_read_b128 v[{d}:{d+3}], v9 offset:{XB + src*8192 + gg*1024}')
        for gg in range(2):
            e(f's_waitcnt lgkmcnt({4 - 4*gg})')
            d = 128 + gg * 16
            for r in range(0, 4, 2):
                e(f'v_pk_add_f32 {pr(d+r)}, {pr(d+r)}, {pr(d+4+r)}')
                e(f'v_pk_add_f32 {pr(d+8+r)}, {pr(d+8+r)}, {pr(d+12+r)}')
            for r in range(4):
                e(f'v_cvt_pk_bf16_f32 v{64+4*gg+r}, v{d+r}, v{d+8+r}')
            e(f'buffer_store_dwordx4 v[{64+4*gg}:{67+4*gg}], v3, s[40:43], s{64+gg} offen sc1')
        L = e.newlabel('ST'); D = e.newlabel('STD')
        e(f's_mov_b32 s72, {POLL_LIMIT}')
        e(f'{L}:')
        e('v_cmp_ne_u32 vcc, s70, v113')
        e('v_cmp_ne_u32 s[64:65], s70, v115')
        e('s_or_b64 vcc, vcc, s[64:65]')
        e(f's_cbranch_scc0 {D}')
        e('s_sleep 4')
        e('buffer_load_dwordx2 v[112:113], v119, s[40:43], s79 offen sc1')
        e('buffer_load_dwordx2 v[114:115], v119, s[40:43], s79 offen offset:256 sc1')
        e('s_waitcnt vmcnt(0)')
        e('s_sub_u32 s72, s72, 1\ns_cmp_lg_u32 s72, 0')
        e(f's_cbranch_scc1 {L}')
        e(f'{D}:')
        for ee in range(2):
            sreg = 112 + 2 * ee
            e(f'v_lshlrev_b32 v30, 16, v{sreg}')
            e(f'v_and_b32 v31, 0xffff0000, v{sreg}')
            e('v_rcp_f32 v31, v31')
            for q in range(4):
                x = 104 + ee * 4 + q
                d = 32 + ee * 16 + 2 * q
                e(f'v_lshlrev_b32 v{d}, 16, v{x}')
                e(f'v_and_b32 v{d+1}, 0xffff0000, v{x}')
                e(f'v_sub_f32 v{d+8}, v{d}, v30')
                e(f'v_sub_f32 v{d+9}, v{d+1}, v30')
                e(f'v_mul_f32 v{d+8}, v{d+8}, v31')
                e(f'v_mul_f32 v{d+9}, v{d+9}, v31')
        e(f's_lshl_b32 s60, s30, 15\ns_lshl_b32 s61, s2, 7\ns_add_u32 s60, s60, s61\ns_add_u32 s60, s60, {WS_FY}')
        e('s_waitcnt vmcnt(0)')
        self.store_flag('s60', 4)
        self.stamp(8)
        e('v_lshrrev_b32 v20, 4, v0\nv_lshlrev_b32 v20, 8, v20\nv_and_b32 v21, 15, v0')
        e('s_lshl_b32 s60, s30, 1')
        e('v_xor_b32 v21, s60, v21\nv_lshl_add_u32 v20, v21, 4, v20\nv_xor_b32 v21, 16, v20')
        e(f's_lshl_b32 s62, s37, 16\ns_lshl_b32 s61, s38, 13\ns_add_u32 s62, s62, s61\ns_lshl_b32 s61, s30, 11\ns_add_u32 s62, s62, s61\ns_add_u32 s62, s62, {WS_YS}')
        e(f's_add_u32 s63, s61, {IMG}')
        e('v_lshrrev_b32 v22, 2, v116\nv_xor_b32 v22, v22, v117\nv_lshlrev_b32 v22, 4, v22\nv_lshl_add_u32 v22, v117, 10, v22')
        e(f'v_and_b32 v23, 3, v116\nv_lshl_add_u32 v22, v23, 2, v22\nv_add_u32 v22, {IMG}, v22')
        e('v_and_b32 v4, 7, v0\nv_lshlrev_b32 v4, 7, v4')
        e(f's_lshr_b32 s66, s37, 3\ns_lshl_b32 s66, s66, 15\ns_lshl_b32 s61, s38, 12\ns_add_u32 s66, s66, s61\ns_lshl_b32 s61, s30, 10\ns_add_u32 s66, s66, s61\ns_add_u32 s66, s66, {WS_FY}')
        self.lds_wait(2, self.o('ysign', 2), 12, 10, sleep=2)
        self.poll64(4, 's66', 6, sleep=self.o('ysleep', 6))
        self.stamp(9)
        e('s_mov_b32 m0, s63')
        e('buffer_load_dwordx4 v20, s[40:43], s62 offen sc1 lds')
        e('buffer_load_dwordx4 v21, s[40:43], s62 offen offset:1024 sc1 lds')
        e('s_waitcnt vmcnt(0)')
        self.lds_signal(9, 12, 10)
        self.lds_wait(9, 4, 12, 10)
        for ee in range(2):
            for q in range(4):
                e(f'ds_read_b32 v{80+ee*4+q}, v22 offset:{q*256+ee*128}')
        for ee in range(2):
            for q in range(4):
                y = 80 + ee * 4 + q
                d = 32 + ee * 16 + 2 * q
                e(f's_waitcnt lgkmcnt({7 - ee*4 - q})')
                e(f'v_lshlrev_b32 v30, 16, v{y}')
                e(f'v_and_b32 v31, 0xffff0000, v{y}')
                e(f'v_fmac_f32 v{d}, v{d+8}, v30')
                e(f'v_fmac_f32 v{d+1}, v{d+9}, v31')
        e('v_and_b32 v4, 7, v116')
        e('v_lshlrev_b32 v5, 1, v117')
        e('v_xor_b32 v4, v4, v5')
        e('v_lshlrev_b32 v4, 4, v4')
        e('v_lshl_add_u32 v4, v116, 8, v4')
        e(f'v_add_u32 v4, {65536}, v4')
        e('v_xor_b32 v5, 16, v4')
        e('v_add_u32 v6, 49152, v4')
        e('v_add_u32 v7, 49152, v5')
        self.srd(48, 24, 2097152)
        self.stamp(10)
        e('s_barrier')
        self.stamp(11)
        for ee in range(2):
            for kq in range(4):
                for h in range(2):
                    d = 128 + ((ee * 4 + kq) * 2 + h) * 4
                    e(f'ds_read_b128 v[{d}:{d+3}], v{4+h+2*ee} offset:{kq*12288}')
        for ee in range(2):
            e(f's_waitcnt lgkmcnt({8 - 8*ee})')
            dd = 32 + ee * 16
            for kq in range(4):
                d = 128 + (ee * 4 + kq) * 8
                for i in range(0, 8, 2):
                    e(f'v_pk_add_f32 v[{dd+i}:{dd+i+1}], v[{dd+i}:{dd+i+1}], v[{d+i}:{d+i+1}]')
            for q in range(4):
                e(f'v_cvt_pk_bf16_f32 v{dd+8+q}, v{dd+2*q}, v{dd+2*q+1}')
            e(f'buffer_store_dwordx4 v[{dd+8}:{dd+11}], v118, s[48:51], s{68+ee} offen')
        e('s_or_b32 s60, s2, s30\ns_cmp_lg_u32 s60, 0\ns_cbranch_scc1 L_NORST')
        self.srd(56, 26, 256)
        e('v_mov_b32 v2, 0\nv_mov_b32 v3, 0')
        e('s_mov_b64 exec, 1')
        e('buffer_store_dwordx2 v[2:3], v2, s[56:59], 0 offen sc1')
        e('s_mov_b64 exec, -1')
        e('L_NORST:')
        self.dump_stamps()
        e('s_endpgm')

    def wd_setup(self):
        e = self.e
        self.srd(52, 22, 1835008)
        e('v_lshrrev_b32 v1, 3, v0')
        e('v_bfe_u32 v2, v0, 4, 1')
        e('v_lshlrev_b32 v2, 2, v2')
        e('v_and_b32 v3, 7, v0')
        e('v_xor_b32 v2, v2, v3')
        e('v_lshlrev_b32 v2, 4, v2')
        e('v_lshl_add_u32 v10, v1, 10, v2')
        e('s_mul_i32 s78, s77, 458752\ns_lshl_b32 s60, s38, 7\ns_add_u32 s78, s78, s60')
        e('s_mul_i32 s79, s77, 12288')
        rot = self.o('rot', 5)
        if rot == 0:
            e('s_mov_b32 s74, 0')
        elif rot == 1:
            e('s_mul_i32 s74, s38, 7\ns_lshr_b32 s74, s74, 1')
        elif rot == 5:
            e('s_mul_i32 s74, s31, 7\ns_lshr_b32 s74, s74, 1')
        elif rot == 6:
            e('s_add_u32 s74, s31, s38\ns_and_b32 s74, s74, 7\ns_mul_i32 s74, s74, 7\ns_lshr_b32 s74, s74, 1')
        elif rot == 3:
            e('s_and_b32 s74, s38, 1\ns_mul_i32 s74, s74, 14')
        elif rot == 4:
            e('s_and_b32 s74, s38, 3\ns_mul_i32 s74, s74, 7')
        else:
            e('s_mul_i32 s74, s38, 7\ns_lshr_b32 s74, s74, 1\ns_mul_i32 s60, s39, 7\ns_add_u32 s74, s74, s60')
            e('s_sub_u32 s60, s74, 28\ns_cmp_ge_u32 s74, 28\ns_cselect_b32 s74, s60, s74')
        e('s_mov_b32 s73, s74')
        e('v_bfe_u32 v1, v0, 2, 2')
        e('v_lshrrev_b32 v2, 5, v0')
        e('v_lshl_add_u32 v2, v2, 3, v1')
        e('v_bfe_u32 v3, v0, 4, 1')
        e('v_bfe_u32 v4, v0, 1, 1')
        e('v_lshl_add_u32 v3, v3, 1, v4')
        e('v_lshrrev_b32 v1, 1, v1')
        e('v_lshlrev_b32 v1, 2, v1')
        e('v_xor_b32 v3, v3, v1')
        e('v_lshlrev_b32 v3, 4, v3')
        e('v_and_b32 v4, 1, v0')
        e('v_lshl_add_u32 v3, v4, 3, v3')
        e('v_lshl_add_u32 v3, v2, 7, v3')
        e(f's_add_u32 s60, s79, {65536}')
        e('v_add_u32 v11, s60, v3')
        e('v_xor_b32 v12, 64, v11')
        e(f's_lshl_b32 s76, s77, 11\ns_add_u32 s76, s76, {L_TRK}')
        e('v_add_u32 v64, s76, v3')
        e('v_xor_b32 v65, 64, v64')
        e('v_lshlrev_b32 v66, 7, v0')

    def ntr(self):
        return self.o('ntr', 0)

    def wslot(self, i):
        s = (i - self.ntr()) % 12
        return (114688 + s * 2048, 49152 + s * 2048) if s < 6 else (65536 + (s - 6) * 2048, (s - 6) * 2048)

    def wd_dma(self, vm, i, trickle=False):
        e = self.e
        if trickle: sb, base = 's76', 0
        else: sb, base = 's79', self.wslot(i)[0]
        e('s_lshl_b32 s60, s73, 14\ns_add_u32 s60, s60, s78')
        e(f's_add_u32 m0, {sb}, {base}')
        e('s_add_u32 s61, s60, 8192')
        e('buffer_load_dwordx4 v10, s[52:55], s60 offen lds')
        e(f's_add_u32 m0, {sb}, {base + 1024}')
        e('s_add_u32 s73, s73, 1')
        e('buffer_load_dwordx4 v10, s[52:55], s61 offen lds')
        e('s_cmp_eq_u32 s73, 28\ns_cselect_b32 s73, 0, s73')
        return vm.issue(2)

    def wd_read(self, dst, i, trickle=False):
        if trickle: va, off = 64, 0
        else: va, off = 11, self.wslot(i)[1]
        return [f'ds_read_b64_tr_b16 v[{dst+4*ct+2*t}:{dst+4*ct+2*t+1}], v{va+ct} offset:{off + t*512}' for ct in range(2) for t in range(2)]

    def wd_pf(self, vm, q, wide=False):
        e = self.e
        sh = 1 if wide else 2
        e(f's_lshr_b32 s60, s32, {sh}\ns_add_u32 s60, s60, {q * (14 if wide else 7)}\ns_add_u32 s60, s60, s74')
        e('s_sub_u32 s61, s60, 28\ns_cmp_ge_u32 s60, 28\ns_cselect_b32 s60, s61, s60')
        e(f's_lshl_b32 s60, s60, 14\ns_and_b32 s61, s32, {(1 << sh) - 1}\ns_lshl_b32 s61, s61, {14 - sh}\ns_add_u32 s60, s60, s61')
        e('s_mul_i32 s61, s77, 458752\ns_add_u32 s60, s60, s61')
        if not wide: e('s_mov_b32 exec_hi, 0')
        e('buffer_load_dword v67, v66, s[52:55], s60 offen')
        if not wide: e('s_mov_b64 exec, -1')
        return vm.issue()

    WD0 = 80
    def wd_tail(self, vm, tok, dyn=False, npf=4, moved=0):
        e = self.e
        Tbig = self.o('wdT', 6); Tsm = self.o('wdS', 2)
        a, b = self.ntr() + self.o('wdA', 12), self.ntr() + self.o('wdB', 17)
        n0 = len(tok)
        waited = moved - 1
        def move(upto):
            nonlocal moved, waited
            while moved < min(upto, 16):
                if moved > waited: vm.wait(e, tok[moved]); waited = moved
                for r in self.wd_read(self.WD0 + 8 * moved, moved): e(r)
                moved += 1
                if moved % 3 == 0: e('s_waitcnt lgkmcnt(4)')
        for i in range(n0, 28):
            T = Tsm if (dyn and a <= i < b) else Tbig
            if dyn and i == b and self.o('wdW', 1):
                self.lds_wait(10, 4, 68, 69, sleep=1)
                while 0 < npf < 4:
                    self.wd_pf(vm, npf); npf += 1
            if i - T >= 0:
                move(i - T + 1)
                if i - T > waited: vm.wait(e, tok[i - T]); waited = i - T
            move(i - 12 + 1)
            if i >= 12: e('s_waitcnt lgkmcnt(0)')
            tok[i] = self.wd_dma(vm, i)
        move(16)

    def g1_helper(self):
        e = self.e
        vm = VM()
        e('s_and_b32 s62, s77, 1')
        e('s_lshr_b32 s63, s77, 1')
        e('v_lshrrev_b32 v1, 3, v0')
        e('v_lshrrev_b32 v2, 4, v0')
        e('v_and_b32 v3, 7, v0')
        e('s_lshl_b32 s60, s62, 2')
        e('v_add_u32 v4, s60, v2')
        e('v_xor_b32 v4, v4, v3')
        e('v_lshlrev_b32 v4, 4, v4')
        e('v_lshl_add_u32 v13, v1, 10, v4')
        e('v_and_b32 v2, 1, v2')
        e('v_lshlrev_b32 v2, 1, v2')
        e('v_add_u32 v2, s60, v2')
        e('v_xor_b32 v2, v2, v3')
        e('v_lshlrev_b32 v2, 4, v2')
        e('v_mul_u32_u24 v1, 3584, v1')
        e('v_add_u32 v14, v1, v2')
        e('s_lshl_b32 s64, s34, 18\ns_lshl_b32 s60, s77, 13\ns_add_u32 s64, s64, s60')
        e('s_mul_i32 s65, s63, 28672\ns_lshl_b32 s60, s35, 7\ns_add_u32 s65, s65, s60')
        e('s_lshl_b32 s66, s77, 10')
        e('s_lshl_b32 s67, s62, 13\ns_lshl_b32 s60, s63, 10\ns_add_u32 s67, s67, s60\ns_add_u32 s67, s67, 32768')
        e('s_mov_b32 s50, 1835008\ns_mov_b32 s51, 0x20000')
        self.kwait()
        e('s_cmp_eq_u32 s62, 0')
        e('s_cselect_b32 s48, s18, s20\ns_cselect_b32 s49, s19, s21')
        def stage(ls):
            sl = SLOT[ls % 3]
            e(f's_add_u32 s60, s36, {ls}\ns_and_b32 s60, s60, 7')
            e('s_lshl_b32 s68, s60, 7\ns_add_u32 s68, s68, s64')
            e('s_mul_i32 s69, s60, 229376')
            e(f's_add_u32 m0, s67, {sl}')
            e('s_add_u32 s69, s69, s65')
            for j in range(4):
                e('buffer_load_dwordx4 v14, s[48:51], s69 offen lds')
                e(f's_add_u32 m0, s66, {sl + 2*j*4096}')
                e('s_add_u32 s69, s69, 57344')
                e('buffer_load_dwordx4 v13, s[44:47], s68 offen lds')
                e(f's_add_u32 m0, s66, {sl + (2*j+1)*4096}')
                e('s_add_u32 s68, s68, 32768')
                e('buffer_load_dwordx4 v13, s[44:47], s68 offen lds')
                if j < 3:
                    e(f's_add_u32 m0, s67, {sl + (j+1)*2048}')
                    e('s_add_u32 s68, s68, 32768')
            return vm.issue(12)
        tok = {}
        tok[0] = stage(0)
        self.stamp(9)
        self.srd(56, 26, 256)
        self.w_tr_addr(15)
        e('s_lshl_b32 s60, s77, 5')
        e('v_xor_b32 v15, s60, v15')
        e('v_add_u32 v15, 32768, v15')
        for i in range(4): e(f'v_mov_b32 v{48+i}, 0x3f803f80')
        e('v_mov_b32 v68, 0\nv_lshlrev_b32 v1, 2, v0')
        e(f'ds_write_b32 v1, v68 offset:{L_CNT}')
        e('s_waitcnt lgkmcnt(0)')
        self.wd_setup()
        tok[1] = stage(1)
        wtok = {}
        npf = 0
        for ls in range(7):
            vm.wait(e, tok[ls])
            e('s_barrier')
            if ls in (0, 2, 4, 6): self.stamp(1 + ls // 2)
            if ls == 7: self.stamp(11)
            if ls == 8: self.stamp(12)
            if ls == 1:
                e('v_mov_b32 v9, 0')
                e('buffer_load_dwordx2 v[54:55], v9, s[56:59], 0 offen sc1'); vm.issue()
            NT = self.ntr()
            it = ls - (6 - NT)
            if 1 <= it <= NT:
                vm.wait(e, wtok[it - 1])
                for r in self.wd_read(self.WD0 + 8 * (it - 1), it - 1, trickle=True): e(r)
                e('s_waitcnt lgkmcnt(0)')
            if 0 <= it < NT: wtok[it] = self.wd_dma(vm, it, trickle=True)
            if 0 <= ls <= 5: tok[ls + 2] = stage(ls + 2)
            if ls == 6: self.gran_issue(); tokG = vm.issue(5)
            if ls < 4:
                L = e.newlabel('NOCS')
                e(f's_cmp_lg_u32 s39, {ls}\ns_cbranch_scc1 {L}')
                e(f'v_add_u32 v9, {SLOT[ls % 3]}, v15')
                for ks in range(4):
                    for t in range(2):
                        e(f'ds_read_b64_tr_b16 v[{32+4*ks+2*t}:{33+4*ks+2*t}], v9 offset:{(16*ks+4*t)*128}')
                e('s_waitcnt lgkmcnt(0)')
                e('v_mfma_f32_32x32x16_bf16 v[16:31], v[48:51], v[32:35], 0')
                for ks in range(1, 4):
                    e(f'v_mfma_f32_32x32x16_bf16 v[16:31], v[48:51], v[{32+4*ks}:{35+4*ks}], v[16:31]')
                e('v_mov_b32 v52, v16')
                e(f'{L}:')
            if ls == 3:
                e('v_readfirstlane_b32 s70, v54\nv_readfirstlane_b32 s71, v55')
                e('s_cmp_lg_u32 s71, 0\ns_cbranch_scc1 L_HAVEN')
                self.get_nonce_blocking(54)
                e('L_HAVEN:')
                e(f's_xor_b32 s71, s70, {TAGX}')
                e('s_add_u32 s60, s36, s39\ns_and_b32 s60, s60, 7\ns_lshl_b32 s61, s35, 3\ns_add_u32 s60, s60, s61')
                e(f's_lshl_b32 s60, s60, 10\ns_lshl_b32 s61, s77, 8\ns_add_u32 s60, s60, s61\ns_add_u32 s60, s60, {WS_CS}')
                e('v_mov_b32 v53, s70')
                e('v_lshlrev_b32 v9, 3, v0')
                e('s_mov_b32 exec_hi, 0')
                e('buffer_store_dwordx2 v[52:53], v9, s[40:43], s60 offen sc1'); vm.issue()
                e('s_mov_b64 exec, -1')
            for _ in range(int(str(self.o('pfsch', 10000000))[1 + ls])):
                self.wd_pf(vm, npf); npf += 1
            if ls == 5 and self.o('pfssm', 1):
                L = e.newlabel('NS')
                e(f's_cmp_lg_u32 s77, 0\ns_cbranch_scc1 {L}')
                self.srd(56, 12, 2097152)
                e('s_lshl_b32 s60, s2, 13')
                e('buffer_load_dword v67, v66, s[56:59], s60 offen')
                e(f'{L}:')
            if ls == 5: pass
        vm.wait(e, tok[7])
        self.lds_signal(3, 68, 69)
        self.stamp(11)
        for i in range(NT, NT + self.o('w6', 4)): wtok[i] = self.wd_dma(vm, i)
        vm.wait(e, tokG)
        self.gran_check_build()
        e('s_waitcnt lgkmcnt(0)')
        self.lds_signal(7, 68, 69)
        self.stamp(12)
        for i in range(len(wtok), NT + 6): wtok[i] = self.wd_dma(vm, i)
        self.lds_wait(4, 4, 68, 69, sleep=1)
        self.wd_tail(vm, wtok, dyn=True, npf=npf, moved=NT)

    def gran_issue(self):
        e = self.e
        e(f's_lshl_b32 s60, s34, 11\ns_lshl_b32 s61, s77, 9\ns_add_u32 s60, s60, s61\ns_add_u32 s60, s60, {WS_STATS}')
        e('v_lshlrev_b32 v9, 3, v0')
        e('buffer_load_dwordx2 v[16:17], v9, s[40:43], s60 offen sc1')
        e('v_and_b32 v8, 31, v0\nv_lshlrev_b32 v8, 3, v8\nv_lshrrev_b32 v7, 5, v0\nv_lshl_add_u32 v7, v7, 10, v8')
        e(f's_lshl_b32 s60, s35, 13\ns_lshl_b32 s61, s77, 8\ns_add_u32 s60, s60, s61\ns_add_u32 s60, s60, {WS_CS}')
        e('s_add_u32 s61, s60, 4096')
        e('buffer_load_dwordx2 v[18:19], v7, s[40:43], s60 offen sc1')
        e('buffer_load_dwordx2 v[20:21], v7, s[40:43], s60 offen offset:2048 sc1')
        e('buffer_load_dwordx2 v[22:23], v7, s[40:43], s61 offen sc1')
        e('buffer_load_dwordx2 v[24:25], v7, s[40:43], s61 offen offset:2048 sc1')

    def gran_check_build(self):
        e = self.e
        L = e.newlabel('GR'); D = e.newlabel('GRD')
        e(f's_mov_b32 s72, {POLL_LIMIT}')
        e(f'{L}:')
        e('v_cmp_ne_u32 vcc, s70, v17')
        for r in (19, 21, 23, 25):
            e(f'v_cmp_ne_u32 s[60:61], s70, v{r}')
            e('s_or_b64 vcc, vcc, s[60:61]')
        e(f's_cbranch_scc0 {D}')
        e('s_sleep 4')
        self.gran_issue()
        e('s_waitcnt vmcnt(0)')
        e('s_sub_u32 s72, s72, 1\ns_cmp_lg_u32 s72, 0')
        e(f's_cbranch_scc1 {L}')
        e(f'{D}:')
        e('v_add_f32 v18, v18, v20\nv_add_f32 v22, v22, v24\nv_add_f32 v18, v18, v22')
        e('v_mov_b32 v19, v18')
        e('v_permlane32_swap_b32 v18, v19')
        e('v_add_f32 v18, v18, v19')
        e('v_cvt_pk_bf16_f32 v19, v18, v18')
        e('v_lshlrev_b32 v20, 16, v19')
        e('v_sub_f32 v20, v18, v20')
        e('v_cvt_pk_bf16_f32 v28, v18, v20')
        e('v_mov_b32 v29, 0')
        e('v_cmp_gt_u32 vcc, 32, v0')
        e('v_cndmask_b32 v28, v29, v28, vcc')
        e('v_lshlrev_b32 v8, 2, v0\ns_lshl_b32 s60, s77, 8\nv_add_u32 v8, s60, v8')
        e(f'ds_write_b32 v8, v28 offset:{L_CS}')
        e(f'ds_write_b32 v8, v16 offset:{L_ST}')
        e('v_mov_b32 v20, s70')
        e(f'ds_write_b32 v29, v20 offset:{L_NONCE}')

    def g2(self):
        e = self.e
        e('L_G2:')
        e('; ---- GEMM2 ----')
        ACC = 16; W = self.WD0
        self.stamp(5)
        e('v_mov_b32 v3, 0')
        e('v_min_u32 v4, 6, v0\nv_lshlrev_b32 v4, 7, v4')
        e(f's_lshl_b32 s61, s37, 2\ns_add_u32 s61, s61, s77\ns_lshl_b32 s61, s61, 10\ns_add_u32 s61, s61, {WS_FH}')
        e(f's_mul_i32 s62, s37, 224\ns_mul_i32 s63, s77, 28\ns_add_u32 s62, s62, s63\ns_lshl_b32 s62, s62, 10\ns_add_u32 s62, s62, {WS_HS}')
        e('v_lshlrev_b32 v8, 4, v0')
        e(f'v_add_u32 v9, {112*1024}, v8')
        e('s_mov_b32 s73, s74')
        self.poll64(4, 's61', 6, sleep=self.o('hsleep', 1))
        self.stamp(7)
        if 'g2st' in self.opt: e('s_memrealtime s[98:99]\ns_waitcnt lgkmcnt(0)\ns_sub_u32 s92, s98, s94\ns_mul_i32 s92, s92, 10\ns_add_u32 s92, s92, s80')
        vm = VM()
        free = [208, 216, 224, 232, 240, 248]
        D = self.o('hD', 6)
        def hload(i):
            d = free.pop(0)
            e('s_lshl_b32 s60, s73, 10\ns_add_u32 s60, s60, s62\ns_add_u32 s73, s73, 1')
            lf = '' if 'hldplain' in self.opt else 'sc1'
            e(f'buffer_load_dwordx4 v[{d}:{d+3}], v8, s[40:43], s60 offen {lf}')
            e(f'buffer_load_dwordx4 v[{d+4}:{d+7}], v9, s[40:43], s60 offen {lf}')
            e('s_cmp_eq_u32 s73, 28\ns_cselect_b32 s73, 0, s73')
            return (vm.issue(2), d)
        tok = {}
        nload = 0
        while nload < min(D, 6):
            tok[nload] = hload(nload); nload += 1
        wreg = {i: W + 8 * i for i in range(16)}
        for i in range(28):
            pre = []
            if 16 <= i + 1 < 28:
                wreg[i + 1] = free.pop(0)
                pre = self.wd_read(wreg[i + 1], i + 1)
            vm.wait(e, tok[i][0])
            if i >= 16: e('s_waitcnt lgkmcnt(0)')
            wd = wreg[i]; hh = tok[i][1]
            k = 0
            for tt in range(2):
                for ct in range(2):
                    a = ACC + (ct * 2 + tt) * 16
                    c = '0' if i == 0 else f'v[{a}:{a+15}]'
                    if 'g2nomf' not in self.opt: e(f'v_mfma_f32_32x32x16_bf16 v[{a}:{a+15}], v[{wd+4*ct}:{wd+4*ct+3}], v[{hh+4*tt}:{hh+4*tt+3}], {c}')
                    if k < len(pre): e(pre[k]); k += 1
            free.append(hh); free.append(wd)
            if 'g2st' in self.opt and i in (0, 3, 7, 11, 15, 21): self.stamp({0: 1, 3: 2, 7: 3, 11: 4, 15: 9, 21: 11}[i])
            while nload < 28 and nload - i - 1 < D and len(free) > 1:
                tok[nload] = hload(nload); nload += 1
            if i == self.o('ysig', 12): self.lds_signal(2, 3, 5)
        self.stamp(8)
        e('v_and_b32 v3, 31, v0\nv_lshrrev_b32 v4, 5, v0\nv_and_b32 v5, 7, v0\nv_xor_b32 v4, v4, v5\nv_lshlrev_b32 v4, 4, v4\nv_lshl_add_u32 v4, v3, 8, v4')
        e(f's_add_u32 s60, s79, 65536')
        e('v_add_u32 v4, s60, v4')
        for q in range(1, 4): e(f'v_xor_b32 v{4+q}, {q*32}, v4')
        for tt in range(2):
            for ct in range(2):
                a = ACC + (ct * 2 + tt) * 16
                for q in range(4):
                    e(f'ds_write_b128 v{4+q}, v[{a+4*q}:{a+4*q+3}] offset:{tt*49152 + ct*128}')
        e('s_waitcnt lgkmcnt(0)')
        self.stamp(10)
        e('s_barrier')
        self.dump_stamps()
        e('s_endpgm')

    def spare(self):
        e = self.e
        e('L_SPARE:')
        e('v_lshlrev_b32 v8, 4, v0')
        e('s_lshl_b32 s63, s37, 6\ns_lshl_b32 s60, s30, 3\ns_add_u32 s63, s63, s60')
        e('s_lshl_b32 s64, s63, 10')
        e('s_add_u32 s65, s64, 4096')
        for j in range(3):
            e(f's_sub_u32 s60, s64, {(3-j)*1024}')
            e(f'v_add_u32 v{10+j}, s60, v8')
        e('v_lshlrev_b32 v9, 6, v0')
        self.kwait()
        Q = 16; K = 48; V = 92; SH = 124
        for j in range(8):
            e(f'buffer_load_dwordx4 v[{Q+4*j}:{Q+4*j+3}], v8, s[44:47], s{64 + j//4} offen offset:{(j%4)*1024}')
        self.srd(48, 6, 2097152)
        self.srd(52, 8, 2097152)
        self.srd(56, 26, 256)
        e('s_barrier')
        for j in range(8):
            e(f'buffer_load_dwordx4 v[{K+12+4*j}:{K+12+4*j+3}], v8, s[48:51], s{64 + j//4} offen offset:{(j%4)*1024}')
        U = 140; S = 204; T = 220; M = 224
        def allreduce(regs):
            for mod in ('quad_perm:[1,0,3,2]', 'quad_perm:[2,3,0,1]', 'row_half_mirror', 'row_mirror'):
                for r in regs:
                    e(f'v_add_f32_dpp v{r}, v{r}, v{r} {mod} row_mask:0xf bank_mask:0xf')
            for sw in ('v_permlane16_swap_b32', 'v_permlane32_swap_b32'):
                for r in regs: e(f'v_mov_b32 v{r+8}, v{r}')
                for r in regs: e(f'{sw} v{r}, v{r+8}')
                for r in regs: e(f'v_add_f32 v{r}, v{r}, v{r+8}')
        for j in range(8):
            e(f's_waitcnt vmcnt({15 - j})')
            for d in range(4):
                e(f'v_lshlrev_b32 v{U+8*j+2*d}, 16, v{Q+4*j+d}')
                e(f'v_and_b32 v{U+8*j+2*d+1}, 0xffff0000, v{Q+4*j+d}')
            u = U + 8 * j
            e(f'v_pk_add_f32 {pr(T)}, {pr(u)}, {pr(u+2)}')
            e(f'v_pk_add_f32 {pr(T+2)}, {pr(u+4)}, {pr(u+6)}')
            e(f'v_pk_add_f32 {pr(T)}, {pr(T)}, {pr(T+2)}')
            e(f'v_add_f32 v{S+j}, v{T}, v{T+1}')
        allreduce([S + j for j in range(8)])
        e('v_mov_b32 v238, 0')
        e('buffer_load_dwordx2 v[236:237], v238, s[56:59], 0 offen sc1')
        self.srd(56, 10, 4096)
        for j in range(8):
            e(f'buffer_load_dwordx4 v[{V+4*j}:{V+4*j+3}], v8, s[52:55], s{64 + j//4} offen offset:{(j%4)*1024}')
        for j in range(3):
            e(f'buffer_load_dwordx4 v[{K+4*j}:{K+4*j+3}], v{10+j}, s[48:51], 0 offen')
        for j in range(4):
            e(f'buffer_load_dwordx4 v[{SH+4*j}:{SH+4*j+3}], v9, s[56:59], 0 offen offset:{j*16}')
        for j in range(8): e(f'v_mul_f32 v{M+j}, {f2u(1/512):#x}, v{S+j}')
        for j in range(8):
            u = U + 8 * j
            for i in range(8): e(f'v_sub_f32 v{u+i}, v{u+i}, v{M+j}')
            e(f'v_pk_mul_f32 {pr(T)}, {pr(u)}, {pr(u)}')
            for i in (2, 4, 6): e(f'v_pk_fma_f32 {pr(T)}, {pr(u+i)}, {pr(u+i)}, {pr(T)}')
            e(f'v_add_f32 v{S+j}, v{T}, v{T+1}')
        allreduce([S + j for j in range(8)])
        e(f'v_mov_b32 v232, v{M}\nv_mov_b32 v233, v{S}')
        for j in range(1, 8):
            e(f'v_cmp_eq_u32 vcc, {j}, v0')
            e(f'v_cndmask_b32 v232, v232, v{M+j}, vcc')
            e(f'v_cndmask_b32 v233, v233, v{S+j}, vcc')
        e(f'v_mul_f32 v233, {f2u(1/512):#x}, v233')
        e('v_cvt_pk_bf16_f32 v233, v233, v233\nv_lshlrev_b32 v233, 16, v233')
        e(f'v_add_f32 v233, {f2u(1e-5):#x}, v233')
        e('v_cvt_pk_bf16_f32 v233, v233, v233\nv_lshlrev_b32 v233, 16, v233')
        e('v_sqrt_f32 v233, v233')
        e('v_cvt_pk_bf16_f32 v234, v232, v233')
        self.stamp(1)
        e('s_waitcnt vmcnt(15)')
        e('v_readfirstlane_b32 s70, v236\nv_readfirstlane_b32 s71, v237')
        e('s_cmp_lg_u32 s71, 0\ns_cbranch_scc1 L_SPN')
        self.srd(56, 26, 256)
        self.get_nonce_blocking(236)
        e('L_SPN:')
        e(f's_xor_b32 s71, s70, {TAGX}')
        e('v_mov_b32 v235, s70')
        e('v_lshlrev_b32 v1, 3, v0')
        e(f's_lshl_b32 s60, s63, 3\ns_add_u32 s60, s60, {WS_STATS}')
        e('s_mov_b64 exec, 0xff')
        e('buffer_store_dwordx2 v[234:235], v1, s[40:43], s60 offen sc1')
        e('s_mov_b64 exec, -1')
        self.stamp(2)
        e('s_waitcnt vmcnt(1)')
        KU = 140; VU = 162; WU = 178; R = 186; O = 204
        e('s_sub_u32 s60, 7, s30')
        e('v_and_b32 v1, 7, v0\nv_xor_b32 v1, s60, v1\nv_lshlrev_b32 v1, 4, v1\nv_lshl_add_u32 v1, v0, 10, v1\nv_add_u32 v1, 65536, v1')
        for d in range(4):
            for j in range(11):
                e(f'v_lshlrev_b32 v{KU+2*j}, 16, v{K+4*j+d}')
                e(f'v_and_b32 v{KU+2*j+1}, 0xffff0000, v{K+4*j+d}')
            for cc in range(2):
                s_ = SH + 4 * d + 2 * cc
                e(f'v_lshlrev_b32 v{WU+0+cc}, 16, v{s_}')
                e(f'v_and_b32 v{WU+2+cc}, 0xffff0000, v{s_}')
                e(f'v_lshlrev_b32 v{WU+4+cc}, 16, v{s_+1}')
                e(f'v_and_b32 v{WU+6+cc}, 0xffff0000, v{s_+1}')
            for j in range(8): e(f'v_pk_mul_f32 {pr(R+2*j)}, {pr(KU+2*j)}, {pr(WU+6)}')
            for tap in (2, 1, 0):
                for j in range(8): e(f'v_pk_fma_f32 {pr(R+2*j)}, {pr(KU+2*(j+3-tap))}, {pr(WU+2*tap)}, {pr(R+2*j)}')
            for j in range(8):
                e(f'v_lshlrev_b32 v{VU+2*j}, 16, v{V+4*j+d}')
                e(f'v_and_b32 v{VU+2*j+1}, 0xffff0000, v{V+4*j+d}')
            for j in range(8): e(f'v_pk_mul_f32 {pr(R+2*j)}, {pr(R+2*j)}, {pr(VU+2*j)}')
            o = O + (d & 1) * 8
            for cc in range(2):
                for q in range(4):
                    e(f'v_cvt_pk_bf16_f32 v{o+4*cc+q}, v{R+2*(7-2*q)+cc}, v{R+2*(6-2*q)+cc}')
                e(f'ds_write_b128 v1, v[{o+4*cc}:{o+4*cc+3}] offset:{(2*d+cc)*128}')
        e('v_mov_b32 v68, 0\nv_lshlrev_b32 v2, 2, v0')
        e(f'ds_write_b32 v2, v68 offset:{L_CNT}')
        e('s_waitcnt lgkmcnt(0)')
        self.stamp(4)
        e('s_barrier')
        e('s_lshl_b32 s60, s30, 13\ns_add_u32 s60, s60, 65536')
        e('v_add_u32 v1, s60, v8')
        for i in range(8): e(f'ds_read_b128 v[{16+4*i}:{19+4*i}], v1 offset:{i*1024}')
        e('v_lshrrev_b32 v2, 3, v0\nv_lshlrev_b32 v2, 12, v2\nv_and_b32 v3, 7, v0\nv_lshl_add_u32 v2, v3, 4, v2')
        e(f's_lshl_b32 s60, s30, 18\ns_lshl_b32 s61, s37, 7\ns_sub_u32 s60, s60, s61\ns_add_u32 s60, s60, {WS_KVT + 3968}')
        for i in range(8):
            e(f'v_xor_b32 v3, {i*16}, v2')
            e(f's_waitcnt lgkmcnt({7-i})')
            e(f'buffer_store_dwordx4 v[{16+4*i}:{19+4*i}], v3, s[40:43], s60 offen sc1')
            e('s_add_u32 s60, s60, 32768')
        e('s_barrier')
        e(f's_lshl_b32 s60, s30, 5\ns_add_u32 s60, s60, s37\ns_lshl_b32 s60, s60, 5\ns_add_u32 s60, s60, {WS_FKV}')
        e('s_waitcnt vmcnt(0)')
        self.store_flag('s60', 4)
        self.stamp(3)
        e('s_cmp_ge_u32 s30, 4\ns_cbranch_scc1 L_SPH')
        self.conv_loads_h()
        self.kvflag_addr()
        e('s_branch L_KVPOLL')
        e('L_SPH:')
        vm = VM()
        self.wd_setup()
        wtok = {}
        for i in range(4): wtok[i] = self.wd_dma(vm, i)
        self.wd_tail(vm, wtok)
        e('s_branch L_G2')

    def build(self):
        self.prologue()
        self.g1_helper()
        self.g2()
        self.g1_mfma()
        self.conv()
        self.spare()
        self.e('L_END:')
        body = self.e.text()
        hdr = open('parallel_sum__ssm_conv_h3__glu_gated_geglu__prompt.s.ref').read().split('; Override launch')[0]
        s = hdr + f'; @launch grid=(256,1,1) block=(512,1,1) lds={LDS_TOTAL}\n'
        s += f'.amdgcn_target "amdgcn-amd-amdhsa--gfx950"\n.text\n.globl {NAME}\n.p2align 8\n.type {NAME},@function\n{NAME}:\n'
        s += body + '    s_endpgm\n'
        s += f'''.section .rodata,"a"
.p2align 6
.amdhsa_kernel {NAME}
  .amdhsa_next_free_vgpr 256
  .amdhsa_next_free_sgpr 102
  .amdhsa_accum_offset 256
  .amdhsa_group_segment_fixed_size 0
  .amdhsa_kernarg_size 104
  .amdhsa_user_sgpr_count 2
  .amdhsa_user_sgpr_kernarg_segment_ptr 1
  .amdhsa_system_sgpr_workgroup_id_x 1
.end_amdhsa_kernel
'''
        return s

if __name__ == '__main__':
    out = sys.argv[1]
    stamps = 'stamps' in sys.argv[2:]
    open(out, 'w').write(Gen(stamps=stamps, opt=set(sys.argv[2:])).build())
```

```python
import sys, struct
from emit import Em

NAME = 'parallel_sum__ssm_conv_h3__glu_gated_geglu__prompt_kernel'

WS_EPOCH = 0
WS_STATS = 0x10000
WS_CS = 0x20000
WS_FKV = 0x80000
WS_FH = 0xA0000
WS_FY = 0xC0000
WS_KVT = 0x100000
WS_YS = 0x300000
WS_HS = 0x500000
WS_DBG = 0xD00000
WS_SIZE = 0xE00000

SLOT = [65536, 16384, 114688]
L_CS = 0
L_ST = 1024
L_NONCE = 2048
L_CNT = 2176
L_TRK = 4096
L_KVI = 4096
XB = 4096
IMG = 39424
HO_OFF = 4160
KV_OFF = 8448
CH_SZ = 13056
LDS_TOTAL = 163840

def f2u(x):
    return struct.unpack('<I', struct.pack('<f', x))[0]

K1C = -2.0 * 1.4426950408889634 * 0.7978845608028654
K2C = K1C * 0.044715
TAGX = 0x5bd1e995
POLL_LIMIT = 100000
pr = lambda x: f'v[{x}:{x+1}]'

class VM:
    def __init__(self): self.n = 0
    def issue(self, k=1):
        self.n += k; return self.n
    def wait(self, e, tok):
        c = self.n - tok
        assert 0 <= c <= 63, c
        e(f's_waitcnt vmcnt({c})')

class Gen:
    def __init__(self, stamps=False, opt=None):
        self.e = Em()
        self.stamps = stamps
        self.opt = opt or set()

    def o(self, name, default):
        for x in self.opt:
            if x.startswith(name + '='): return int(x.split('=')[1])
        return default

    def srd(self, d, ptr, size):
        e = self.e
        e(f's_mov_b32 s{d}, s{ptr}\ns_mov_b32 s{d+1}, s{ptr+1}\ns_mov_b32 s{d+2}, {size}\ns_mov_b32 s{d+3}, 0x20000')

    def stamp(self, k):
        if self.stamps:
            ins = 's_memrealtime' if 'rt' in self.opt else 's_memtime'
            self.e(f'{ins} s[98:99]\ns_waitcnt lgkmcnt(0)\ns_mov_b32 s{80+k}, s98')

    def kwait(self):
        e = self.e
        e('s_waitcnt lgkmcnt(0)')
        if self.stamps:
            e(('s_mov_b32 s80, s96' if 'rt' in self.opt else 's_mov_b32 s80, s98') + '\ns_mov_b32 s94, s96')
            for k in range(1, 14): e(f's_mov_b32 s{80+k}, 0')
        self.srd(44, 4, 2097152)
        self.srd(40, 28, WS_SIZE)

    def dump_stamps(self):
        if not self.stamps: return
        e = self.e
        e('s_waitcnt vmcnt(0) lgkmcnt(0)')
        self.stamp(15)
        e('s_memrealtime s[98:99]\ns_waitcnt lgkmcnt(0)\ns_mov_b32 s93, s98')
        e('s_lshl_b32 s60, s2, 3\ns_add_u32 s60, s60, s30\ns_lshl_b32 s60, s60, 6\ns_add_u32 s60, s60, %d' % WS_DBG)
        e('v_mov_b32 v1, 0')
        for g in range(4):
            for i in range(4):
                e(f'v_mov_b32 v{4+i}, s{80+4*g+i}')
            e(f'buffer_store_dwordx4 v[4:7], v1, s[40:43], s60 offen offset:{16*g}')
        e('s_waitcnt vmcnt(0)')

    def poll64(self, vaddr, soff, t, sleep=1):
        e = self.e
        L = e.newlabel('POLL'); D = e.newlabel('POLLD')
        e(f's_mov_b32 s72, {POLL_LIMIT}')
        e(f'{L}:')
        e(f'buffer_load_dwordx2 v[{t}:{t+1}], v{vaddr}, s[40:43], {soff} offen sc1')
        e('s_waitcnt vmcnt(0)')
        e(f'v_cmp_ne_u64 vcc, s[70:71], v[{t}:{t+1}]')
        e(f's_cbranch_vccz {D}')
        e(f's_sleep {sleep}')
        e('s_sub_u32 s72, s72, 1')
        e('s_cmp_lg_u32 s72, 0')
        e(f's_cbranch_scc1 {L}')
        e(f'{D}:')

    def get_nonce_blocking(self, t):
        e = self.e
        L = e.newlabel('NON'); D = e.newlabel('NOND')
        e(f's_mov_b32 s72, {POLL_LIMIT}')
        e(f'v_mov_b32 v{t+2}, 0')
        e(f'{L}:')
        e(f'buffer_load_dwordx2 v[{t}:{t+1}], v{t+2}, s[56:59], 0 offen sc1')
        e('s_waitcnt vmcnt(0)')
        e(f'v_readfirstlane_b32 s70, v{t}')
        e(f'v_readfirstlane_b32 s71, v{t+1}')
        e('s_cmp_lg_u32 s71, 0')
        e(f's_cbranch_scc1 {D}')
        e('s_sleep 4')
        e('s_sub_u32 s72, s72, 1')
        e('s_cmp_lg_u32 s72, 0')
        e(f's_cbranch_scc1 {L}')
        e(f'{D}:')
        e(f's_xor_b32 s71, s70, {TAGX}')

    def store_flag(self, soff_reg, t):
        e = self.e
        e(f'v_mov_b32 v{t}, s70\nv_mov_b32 v{t+1}, s71\nv_mov_b32 v{t+2}, 0')
        e('s_mov_b64 exec, 1')
        e(f'buffer_store_dwordx2 v[{t}:{t+1}], v{t+2}, s[40:43], {soff_reg} offen sc1')
        e('s_mov_b64 exec, -1')

    def lds_signal(self, k, vz, vt):
        e = self.e
        e(f'v_mov_b32 v{vt}, 1')
        e('s_mov_b64 exec, 1')
        e(f'ds_add_u32 v{vz}, v{vt} offset:{L_CNT + 4*k}')
        e('s_mov_b64 exec, -1')

    def lds_wait(self, k, n, vz, vt, sleep=0):
        e = self.e
        L = e.newlabel('SB')
        e(f's_mov_b32 s72, {POLL_LIMIT*8}')
        e(f'{L}:')
        if sleep: e(f's_sleep {sleep}')
        e(f'ds_read_b32 v{vt}, v{vz} offset:{L_CNT + 4*k}')
        e('s_sub_u32 s72, s72, 1')
        e('s_waitcnt lgkmcnt(0)')
        e(f'v_readfirstlane_b32 s60, v{vt}')
        e('s_cmp_eq_u32 s72, 0')
        e(f's_cbranch_scc1 {L}_D')
        e(f's_cmp_lt_u32 s60, {n}')
        e(f's_cbranch_scc1 {L}')
        e(f'{L}_D:')

    def prologue(self):
        e = self.e
        e('s_load_dwordx16 s[4:19], s[0:1], 0')
        e('s_load_dwordx8 s[20:27], s[0:1], 64')
        e('s_load_dwordx2 s[28:29], s[0:1], 96')
        if self.stamps:
            e('s_memtime s[98:99]\ns_memrealtime s[96:97]')
        if self.o('padto',0) or self.o('xccpad',0): e('s_memrealtime s[96:97]')
        e('s_cmp_ge_u32 s2, 256')
        e('s_cbranch_scc1 L_END')
        e('v_lshrrev_b32 v1, 6, v0')
        e('v_and_b32 v0, 63, v0')
        e('v_readfirstlane_b32 s30, v1')
        e('s_and_b32 s31, s2, 7')
        e('s_lshr_b32 s32, s2, 3')
        e('s_cmp_lg_u32 s30, 0')
        e('s_cbranch_scc1 L_NOPF')
        e('s_getpc_b64 s[60:61]')
        e('L_PC:')
        e('v_lshlrev_b32 v1, 5, v0')
        e('v_add_u32 v1, s32, v1')
        e('v_lshlrev_b32 v1, 7, v1')
        e('v_cmp_gt_u32 vcc, L_END-L_PC, v1')
        e('s_and_saveexec_b64 s[62:63], vcc')
        e('s_cbranch_execz L_PFX')
        e('global_load_dword v79, v1, s[60:61]')
        e('L_PFX:')
        e('s_mov_b64 exec, s[62:63]')
        e('L_NOPF:')
        e('s_and_b32 s39, s32, 3')
        e('s_lshr_b32 s38, s32, 2')
        e('s_lshl_b32 s37, s31, 2')
        e('s_add_u32 s37, s37, s39')
        e('s_and_b32 s60, s31, 4')
        e('s_and_b32 s61, s31, 3')
        e('s_add_u32 s34, s60, s39')
        e('s_mul_i32 s35, s61, 7')
        e('s_add_u32 s35, s35, s38')
        e('s_lshl_b32 s36, s61, 1')
        e('s_add_u32 s36, s36, s60')
        e('s_and_b32 s36, s36, 7')
        e('s_sub_u32 s77, s30, 4')
        if 'wdtest' in self.opt:
            e('s_cmp_lt_u32 s30, 4\ns_cbranch_scc1 L_END')
            self.kwait()
            self.wd_setup()
            for rep in range(3):
                self.stamp(1 + 2 * rep)
                vm = VM(); wtok = {}
                for i in range(4): wtok[i] = self.wd_dma(vm, i)
                self.wd_tail(vm, wtok)
                e('s_waitcnt vmcnt(0) lgkmcnt(0)')
                self.stamp(2 + 2 * rep)
            self.dump_stamps()
            e('s_endpgm')
        e('s_cmp_ge_u32 s32, 28')
        e('s_cbranch_scc1 L_SPARE')
        e('s_cmp_lt_u32 s30, 4')
        e('s_cbranch_scc1 L_MFMA')

    def w_tr_addr(self, dst):
        e = self.e
        e('v_lshrrev_b32 v2, 5, v0')
        e('v_bfe_u32 v3, v0, 2, 2')
        e('v_bfe_u32 v4, v0, 1, 1')
        e('v_and_b32 v5, 1, v0')
        e('v_bfe_u32 v6, v0, 4, 1')
        e('v_and_b32 v7, 2, v3')
        e('v_lshl_add_u32 v7, v4, 2, v7')
        e('v_xor_b32 v7, v7, v5')
        e('v_lshlrev_b32 v7, 4, v7')
        e('v_lshl_add_u32 v7, v6, 3, v7')
        e('v_lshl_add_u32 v3, v2, 3, v3')
        e('v_lshl_add_u32 v7, v3, 7, v7')
        e(f'v_lshl_add_u32 v{dst}, v4, 13, v7')

    def g1_mfma(self):
        e = self.e
        ACC = 128; FR = 80
        XA = [16, 24]; WA = [20, 28]
        e('L_MFMA:')
        e('v_and_b32 v1, 31, v0')
        e('v_lshrrev_b32 v2, 5, v0')
        e('v_bfe_u32 v3, v1, 1, 3')
        e('v_xor_b32 v3, v3, v2')
        e('v_lshlrev_b32 v3, 4, v3')
        e('v_lshl_add_u32 v3, v1, 7, v3')
        e('s_lshl_b32 s60, s30, 13')
        e('s_add_u32 s60, s60, 16384')
        e('v_add_u32 v16, s60, v3')
        for ks in range(1, 4): e(f'v_xor_b32 v{16+ks}, {ks*32}, v16')
        self.w_tr_addr(20)
        e(f'v_add_u32 v20, {16384+32768}, v20')
        for j in range(1, 4): e(f'v_xor_b32 v{20+j}, {j*32}, v20')
        for i in range(8): e(f'v_add_u32 v{24+i}, {114688-16384}, v{16+i}')
        EX = 48
        for i in range(24):
            if i % 4: e(f'v_mov_b32 v{EX+i}, 0')
        e('v_lshlrev_b32 v8, 4, v0')
        e('v_lshlrev_b32 v9, 2, v0')
        e('v_lshlrev_b32 v10, 2, v1')
        e('s_lshl_b32 s60, s30, 8')
        e('v_add_u32 v10, s60, v10')
        e('v_mov_b32 v11, 0')
        self.kwait()
        e('s_cmp_lg_u32 s2, 0\ns_cbranch_scc1 L_NOPROD\ns_cmp_lg_u32 s30, 1\ns_cbranch_scc1 L_NOPROD')
        e('buffer_load_dword v2, v11, s[40:43], 0 offen sc1')
        self.srd(56, 26, 256)
        e('s_waitcnt vmcnt(0)')
        e('v_add_u32 v2, 1, v2\nv_mov_b32 v3, 1')
        e('s_mov_b64 exec, 1')
        e('buffer_store_dwordx2 v[2:3], v11, s[56:59], 0 offen sc1')
        e('buffer_store_dword v2, v11, s[40:43], 0 offen sc1')
        e('s_mov_b64 exec, -1')
        e('L_NOPROD:')

        def frag(st, which):
            return FR + st * 24 + which * 4
        def reads(ls, ks, st):
            base = SLOT[ls % 3]
            s = 1 if base == 114688 else 0
            off = base - (114688 if s else 16384)
            def X(tt):
                d = frag(st, tt)
                return [f'ds_read_b128 v[{d}:{d+3}], v{XA[s]+ks} offset:{off + tt*4096}']
            def W(j):
                d = frag(st, 2 + j)
                return [f'ds_read_b64_tr_b16 v[{d+2*t}:{d+2*t+1}], v{WA[s]+j} offset:{off + (16*ks+4*t)*128}' for t in range(2)]
            return X(0) + W(0) + W(1) + X(1) + W(2) + W(3)
        extra = [f'ds_read_b32 v32, v10 offset:{L_ST}', f'ds_read_b32 v33, v10 offset:{L_ST+128}'] + \
                [f'ds_read_b32 v{EX+8+4*j}, v9 offset:{L_CS + j*256}' for j in range(4)] + [f'ds_read_b32 v34, v11 offset:{L_NONCE}']
        order = [(0, 0), (0, 1), (1, 0), (1, 1), (0, 2), (1, 2), (0, 3), (1, 3)]
        needn = [3, 5, 6, 6, 8, 8, 10, 10]
        def mfma(A, B, tt, j, first=False):
            a = ACC + (tt * 4 + j) * 16
            c = '0' if first else f'v[{a}:{a+15}]'
            return f'v_mfma_f32_32x32x16_bf16 v[{a}:{a+15}], v[{A}:{A+3}], v[{B}:{B+3}], {c}'
        self.stamp(1)
        e('s_barrier')
        self.stamp(2)
        for r in reads(0, 0, 0): e(r)
        steps = [(ls, ks) for ls in range(8) for ks in range(4)]
        for si, (ls, ks) in enumerate(steps):
            st = si & 1
            if si + 1 < len(steps):
                nls, nks = steps[si + 1]
                nxt = reads(nls, nks, st ^ 1)
            else:
                nxt = extra
            boundary = (ks == 3)
            issued = 0
            done_cur = 0
            plan = [0, 0, 2, 2, 2, 2, 2, 0] if boundary else [2, 2, 2, 2, 1, 1, 0, 0]
            for mi, (tt, j) in enumerate(order):
                if needn[mi] > done_cur:
                    e(f's_waitcnt lgkmcnt({10 - needn[mi] + issued})')
                    done_cur = needn[mi]
                e(mfma(frag(st, 2 + j), frag(st, tt), tt, j, first=(si == 0)))
                if boundary and mi == 1:
                    if ls >= 6: e(f'ds_read_b32 v35, v11 offset:{L_CNT + 4*(3 if ls == 6 else 7)}')
                    e('s_waitcnt lgkmcnt(0)')
                    done_cur = 10
                    if ls < 6: e('s_barrier')
                    else:
                        self.lds_signal(4 if ls == 6 else 5, 11, 34)
                        Lok = e.newlabel('OK')
                        e('v_readfirstlane_b32 s60, v35')
                        e('s_cmp_ge_u32 s60, 4')
                        e(f's_cbranch_scc1 {Lok}')
                        self.lds_wait(3 if ls == 6 else 7, 4, 11, 35)
                        e(f'{Lok}:')
                        issued_extra = 1
                for _ in range(plan[mi]):
                    if issued < len(nxt):
                        e(nxt[issued]); issued += 1
            assert issued == len(nxt)
        e('s_waitcnt lgkmcnt(0)')
        for tt in range(2):
            e(f'v_and_b32 v35, 0xffff, v{32+tt}')
            e('v_xor_b32 v35, 0x8000, v35')
            e(f'v_lshl_or_b32 v{EX+4*tt}, v35, 16, v35')
            e(f'v_and_b32 v{32+tt}, 0xffff0000, v{32+tt}')
        e('v_readfirstlane_b32 s70, v34')
        for (tt, j) in [(0, 0), (0, 1), (0, 2), (0, 3), (1, 0), (1, 1), (1, 2), (1, 3)]:
            e(mfma(EX + 8 + 4 * j, EX + 4 * tt, tt, j))
        self.stamp(3)
        e(f's_xor_b32 s71, s70, {TAGX}')
        for tt in range(2):
            b = 36 + 6 * tt
            e(f'v_rcp_f32 v35, v{32+tt}')
            e(f'v_mul_f32 v{b+4}, v{32+tt}, v{32+tt}')
            e(f'v_mul_f32 v{b}, {f2u(K1C):#x}, v35')
            e(f'v_mul_f32 v{b+2}, v35, v35')
            e(f'v_mul_f32 v{b+2}, v{b+2}, v35')
            e(f'v_mul_f32 v{b+2}, {f2u(K2C):#x}, v{b+2}')
            e(f'v_mov_b32 v{b+1}, v{b}')
            e(f'v_mov_b32 v{b+5}, v{b+4}')
            e(f'v_mov_b32 v{b+3}, v{b+2}')
        e('s_lshl_b32 s64, s34, 3\ns_lshl_b32 s61, s30, 1\ns_add_u32 s64, s64, s61')
        e('s_mul_i32 s64, s64, 112\ns_lshl_b32 s61, s35, 2\ns_add_u32 s64, s64, s61\ns_lshl_b32 s64, s64, 10')
        e(f's_add_u32 s64, s64, {WS_HS}')
        e(f's_add_u32 s65, s64, {112*1024}')
        self.kvflag_addr()
        e('v_mov_b32 v72, 0\nv_mov_b32 v73, 0')
        for tt in range(2):
            b = 36 + 6 * tt
            for j in range(4):
                a = ACC + (tt * 4 + j) * 16
                T = 80 + ((tt * 4 + j) & 1) * 12
                P = [0, 2, 8, 10]
                for i, p in enumerate(P): e(f'v_pk_mul_f32 {pr(T+2*i)}, {pr(a+p)}, {pr(a+p)}')
                for i, p in enumerate(P): e(f'v_pk_fma_f32 {pr(T+2*i)}, {pr(T+2*i)}, {pr(b+2)}, {pr(b)}')
                for i, p in enumerate(P): e(f'v_pk_mul_f32 {pr(T+2*i)}, {pr(T+2*i)}, {pr(a+p)}')
                for i in range(8): e(f'v_exp_f32 v{T+i}, v{T+i}')
                for i, p in enumerate(P): e(f'v_pk_mul_f32 {pr(a+p)}, {pr(a+p)}, {pr(a+p+4)}')
                for i, p in enumerate(P): e(f'v_pk_fma_f32 {pr(T+2*i)}, {pr(T+2*i)}, {pr(b+4)}, {pr(b+4)}')
                for i in range(8): e(f'v_rcp_f32 v{T+i}, v{T+i}')
                for i, p in enumerate(P): e(f'v_pk_mul_f32 {pr(a+p)}, {pr(a+p)}, {pr(T+2*i)}')
                for i, p in enumerate(P): e(f'v_cvt_pk_bf16_f32 v{T+8+i}, v{a+p}, v{a+p+1}')
                hf = '' if 'hplain' in self.opt else ('nt' if 'hnt' in self.opt else ('sc0 sc1' if 'hsc01' in self.opt else 'sc1'))
                if 'nohst' not in self.opt: e(f'buffer_store_dwordx4 v[{T+8}:{T+11}], v8, s[40:43], s{64+tt} offen offset:{j*1024} {hf}')
                if tt * 4 + j == self.o('cvat', 0):
                    self.lds_wait(5, 4, 11, 35)
                    self.conv_loads_h()
                if tt * 4 + j == self.o('kfat', 5):
                    e('buffer_load_dwordx2 v[72:73], v74, s[40:43], s75 offen sc1')
        self.lds_signal(10, 11, 35)
        self.stamp(4)
        e('s_lshl_b32 s76, s34, 2\ns_add_u32 s76, s76, s30\ns_lshl_b32 s76, s76, 2\ns_and_b32 s61, s31, 3\ns_add_u32 s76, s76, s61')
        e(f's_lshl_b32 s76, s76, 3\ns_add_u32 s76, s76, s38\ns_lshl_b32 s76, s76, 7\ns_add_u32 s76, s76, {WS_FH}')
        e(f's_waitcnt vmcnt({7 - self.o("kfat", 5)})')
        e('v_cmp_ne_u64 vcc, s[70:71], v[72:73]')
        e('s_cbranch_vccnz L_KVSLOW')
        self.conv_loads_kv()
        e('s_waitcnt vmcnt(2)')
        self.store_flag('s76', 4)
        self.stamp(12)
        e('s_waitcnt vmcnt(1)')
        self.stamp(5)
        e('s_branch L_CONV')
        e('L_KVSLOW:')
        e('s_waitcnt vmcnt(0)')
        self.store_flag('s76', 4)
        self.stamp(12)
        e('L_KVPOLL:')
        self.poll64(74, 's75', 72, sleep=16)
        self.conv_loads_kv()
        e('s_waitcnt vmcnt(0)')
        self.stamp(5)

    def kvflag_addr(self):
        e = self.e
        e('v_and_b32 v74, 15, v0\nv_lshlrev_b32 v74, 5, v74')
        e(f's_lshr_b32 s75, s2, 5\ns_lshl_b32 s75, s75, 10\ns_and_b32 s60, s30, 1\ns_lshl_b32 s60, s60, 9\ns_sub_u32 s75, s75, s60\ns_add_u32 s75, s75, {WS_FKV + 512}')

    def conv_loads_h(self):
        e = self.e
        self.srd(48, 12, 2097152)
        self.srd(52, 14, 1024)
        e('s_lshr_b32 s62, s30, 1')
        e('s_and_b32 s63, s30, 1')
        e('s_lshl_b32 s78, s2, 1\ns_add_u32 s78, s78, s62')
        e(f's_mul_i32 s74, s62, {CH_SZ}\ns_add_u32 s74, s74, {IMG}')
        e('s_lshl_b32 s67, s78, 12\ns_lshl_b32 s61, s63, 1\ns_add_u32 s60, s67, s61')
        e(f's_mul_i32 s73, s63, {HO_OFF}\ns_add_u32 s73, s73, s74')
        e('s_add_u32 m0, s73, 32')
        for i in range(4):
            e(f'buffer_load_dwordx4 v8, s[48:51], s60 offen offset:{i*1024} lds')
        e('v_mov_b32 v12, 0')
        e('buffer_load_ushort v13, v12, s[48:51], s67 offen')
        e('s_lshl_b32 s67, s78, 1')
        e('buffer_load_ushort v14, v12, s[52:55], s67 offen')
        e('v_lshrrev_b32 v116, 3, v0')
        e('s_lshl_b32 s60, s30, 3')
        e('v_add_u32 v116, s60, v116')
        e('v_and_b32 v117, 7, v0')
        e('v_lshlrev_b32 v118, 10, v116')
        e('v_lshl_add_u32 v118, v117, 4, v118')
        e('s_lshl_b32 s68, s37, 16\ns_lshl_b32 s60, s38, 7\ns_add_u32 s68, s68, s60')
        e('s_add_u32 s69, s68, 32768')
        e('buffer_load_dwordx4 v[104:107], v118, s[44:47], s68 offen')
        e('buffer_load_dwordx4 v[108:111], v118, s[44:47], s69 offen')
        e('v_lshlrev_b32 v119, 3, v116')
        e(f's_lshl_b32 s79, s37, 9\ns_add_u32 s79, s79, {WS_STATS}')
        e('buffer_load_dwordx2 v[112:113], v119, s[40:43], s79 offen sc1')
        e('buffer_load_dwordx2 v[114:115], v119, s[40:43], s79 offen offset:256 sc1')

    def conv_loads_kv(self):
        e = self.e
        e('s_and_b32 s63, s30, 1')
        e(f's_lshl_b32 s60, s78, 12\ns_lshl_b32 s67, s63, 11\ns_add_u32 s60, s60, s67\ns_add_u32 s60, s60, {WS_KVT}')
        e(f's_add_u32 s67, s67, s74')
        e(f's_add_u32 m0, s67, {KV_OFF}')
        for i in range(2):
            e(f'buffer_load_dwordx4 v8, s[40:43], s60 offen offset:{i*1024} sc1 lds')

    def conv(self):
        e = self.e
        e('L_CONV:')
        e('; ---- conv ----')
        e('s_and_b32 s63, s30, 1')
        e('v_lshlrev_b32 v15, 16, v13')
        e('v_cmp_eq_u32 vcc, 7, v0')
        e('s_cmp_eq_u32 s63, 1')
        e('s_cselect_b64 vcc, vcc, 0')
        e('v_mov_b32 v12, 0')
        e('v_cndmask_b32 v15, v12, v15, vcc')
        e('v_lshlrev_b32 v16, 2, v0')
        e('v_add_u32 v16, s73, v16')
        e('s_mov_b64 exec, 0xff')
        e('ds_write_b32 v16, v15')
        e('s_mov_b64 exec, -1')
        e('v_lshlrev_b32 v16, 2, v0')
        e('s_lshl_b32 s60, s63, 8')
        e(f's_add_u32 s60, s60, {KV_OFF+4096}')
        e('s_add_u32 s60, s60, s74')
        e('v_add_u32 v16, s60, v16')
        e('ds_write_b32 v16, v12')
        e('s_waitcnt lgkmcnt(0)')
        self.lds_signal(0, 12, 16)
        ACC = 32; AF = [128, 160]; BF = [192, 224]
        e('v_and_b32 v1, 15, v0')
        e('v_lshrrev_b32 v2, 4, v0')
        e('v_add_u32 v3, 1, v1')
        e('v_lshrrev_b32 v3, 1, v3')
        e('v_lshl_add_u32 v3, v2, 2, v3')
        e('v_lshlrev_b32 v3, 2, v3')
        e('v_and_b32 v4, 1, v1')
        e('v_xor_b32 v4, 1, v4')
        e(f'v_mul_u32_u24 v4, {HO_OFF}, v4')
        e('v_add_u32 v3, v3, v4')
        e('s_lshl_b32 s60, s63, 8')
        e('s_add_u32 s60, s60, s74')
        e('v_add_u32 v20, s60, v3')
        for i in range(1, 4): e(f'v_add_u32 v{20+i}, {i*1024}, v20')
        e('v_lshlrev_b32 v3, 5, v1')
        e('v_lshlrev_b32 v4, 4, v2')
        e('v_sub_u32 v3, v4, v3')
        e(f's_add_u32 s60, s60, {KV_OFF+480}')
        e('v_add_u32 v24, s60, v3')
        e('v_lshlrev_b32 v3, 3, v2')
        e('v_add_u32 v3, v3, v1')
        e('v_sub_u32 v3, 15, v3')
        e('v_and_b32 v4, 1, v3')
        e('v_lshlrev_b32 v4, 4, v4')
        e('v_lshlrev_b32 v4, v4, v14')
        e('v_ashrrev_i32 v3, 1, v3')
        for d in range(4):
            e(f'v_cmp_eq_u32 vcc, {d}, v3')
            e(f'v_cndmask_b32 v{26+d}, v12, v4, vcc')
        self.lds_wait(0, 4, 12, 16)
        self.stamp(6)
        def rd(p, st):
            out = []
            for a in range(8):
                d = AF[st] + 4 * a
                o = (a & 1) * 128 + p * 16
                out.append(f'ds_read2_b32 v[{d}:{d+1}], v{20 + (a >> 1)} offset0:{o} offset1:{o+1}')
                out.append(f'ds_read2_b32 v[{d+2}:{d+3}], v{20 + (a >> 1)} offset0:{o+2} offset1:{o+3}')
                d = BF[st] + 4 * a
                out.append(f'ds_read_b128 v[{d}:{d+3}], v24 offset:{(7-a)*512 + p*64}')
            return out
        for r in rd(0, 0): e(r)
        for p in range(4):
            st = p & 1
            nxt = rd(p + 1, st ^ 1) if p < 3 else []
            e('s_waitcnt lgkmcnt(0)')
            k = 0
            for a in range(8):
                for b in range(8 - a):
                    g = a + b
                    c = '0' if (p == 0 and a == 0) else f'v[{ACC+4*g}:{ACC+4*g+3}]'
                    e(f'v_mfma_f32_16x16x32_bf16 v[{ACC+4*g}:{ACC+4*g+3}], v[{AF[st]+4*a}:{AF[st]+4*a+3}], v[{BF[st]+4*b}:{BF[st]+4*b+3}], {c}')
                    if k < len(nxt):
                        e(nxt[k]); k += 1
            if p == 0:
                e('s_cmp_lg_u32 s63, 0')
                e('s_cbranch_scc1 L_NOD')
                for b in range(8):
                    e(f'v_mfma_f32_16x16x32_bf16 v[{ACC+4*b}:{ACC+4*b+3}], v[26:29], v[{BF[st]+4*b}:{BF[st]+4*b+3}], v[{ACC+4*b}:{ACC+4*b+3}]')
                e('L_NOD:')
        self.stamp(7)
        e('v_lshlrev_b32 v8, 4, v0')
        e('s_lshl_b32 s60, s30, 13')
        e('v_add_u32 v9, s60, v8')
        for g in range(8):
            e(f'ds_write_b128 v9, v[{ACC+4*g}:{ACC+4*g+3}] offset:{XB + g*1024}')
        e('s_waitcnt lgkmcnt(0)')
        self.lds_signal(1, 12, 10)
        e('v_lshrrev_b32 v3, 2, v1')
        e('v_lshlrev_b32 v3, 16, v3')
        e('v_and_b32 v4, 3, v1')
        e('v_lshl_add_u32 v3, v4, 6, v3')
        e('v_lshl_add_u32 v3, v2, 4, v3')
        e(f's_lshl_b32 s64, s30, 19\ns_lshl_b32 s61, s2, 8\ns_add_u32 s64, s64, s61\ns_add_u32 s64, s64, {WS_YS}')
        e('s_add_u32 s65, s64, 0x40000')
        e('s_lshl_b32 s60, s30, 11')
        e('v_add_u32 v9, s60, v8')
        self.lds_wait(1, 4, 12, 10)
        for gg in range(2):
            for src in range(4):
                d = 128 + (gg * 4 + src) * 4
                e(f'ds_read_b128 v[{d}:{d+3}], v9 offset:{XB + src*8192 + gg*1024}')
        for gg in range(2):
            e(f's_waitcnt lgkmcnt({4 - 4*gg})')
            d = 128 + gg * 16
            for r in range(0, 4, 2):
                e(f'v_pk_add_f32 {pr(d+r)}, {pr(d+r)}, {pr(d+4+r)}')
                e(f'v_pk_add_f32 {pr(d+8+r)}, {pr(d+8+r)}, {pr(d+12+r)}')
            for r in range(4):
                e(f'v_cvt_pk_bf16_f32 v{64+4*gg+r}, v{d+r}, v{d+8+r}')
            e(f'buffer_store_dwordx4 v[{64+4*gg}:{67+4*gg}], v3, s[40:43], s{64+gg} offen sc1')
        L = e.newlabel('ST'); D = e.newlabel('STD')
        e(f's_mov_b32 s72, {POLL_LIMIT}')
        e(f'{L}:')
        e('v_cmp_ne_u32 vcc, s70, v113')
        e('v_cmp_ne_u32 s[64:65], s70, v115')
        e('s_or_b64 vcc, vcc, s[64:65]')
        e(f's_cbranch_scc0 {D}')
        e('s_sleep 4')
        e('buffer_load_dwordx2 v[112:113], v119, s[40:43], s79 offen sc1')
        e('buffer_load_dwordx2 v[114:115], v119, s[40:43], s79 offen offset:256 sc1')
        e('s_waitcnt vmcnt(0)')
        e('s_sub_u32 s72, s72, 1\ns_cmp_lg_u32 s72, 0')
        e(f's_cbranch_scc1 {L}')
        e(f'{D}:')
        for ee in range(2):
            sreg = 112 + 2 * ee
            e(f'v_lshlrev_b32 v30, 16, v{sreg}')
            e(f'v_and_b32 v31, 0xffff0000, v{sreg}')
            e('v_rcp_f32 v31, v31')
            for q in range(4):
                x = 104 + ee * 4 + q
                d = 32 + ee * 16 + 2 * q
                e(f'v_lshlrev_b32 v{d}, 16, v{x}')
                e(f'v_and_b32 v{d+1}, 0xffff0000, v{x}')
                e(f'v_sub_f32 v{d+8}, v{d}, v30')
                e(f'v_sub_f32 v{d+9}, v{d+1}, v30')
                e(f'v_mul_f32 v{d+8}, v{d+8}, v31')
                e(f'v_mul_f32 v{d+9}, v{d+9}, v31')
        e(f's_lshl_b32 s60, s30, 15\ns_lshl_b32 s61, s2, 7\ns_add_u32 s60, s60, s61\ns_add_u32 s60, s60, {WS_FY}')
        e('s_waitcnt vmcnt(0)')
        self.store_flag('s60', 4)
        self.stamp(8)
        e('v_lshrrev_b32 v20, 4, v0\nv_lshlrev_b32 v20, 8, v20\nv_and_b32 v21, 15, v0')
        e('s_lshl_b32 s60, s30, 1')
        e('v_xor_b32 v21, s60, v21\nv_lshl_add_u32 v20, v21, 4, v20\nv_xor_b32 v21, 16, v20')
        e(f's_lshl_b32 s62, s37, 16\ns_lshl_b32 s61, s38, 13\ns_add_u32 s62, s62, s61\ns_lshl_b32 s61, s30, 11\ns_add_u32 s62, s62, s61\ns_add_u32 s62, s62, {WS_YS}')
        e(f's_add_u32 s63, s61, {IMG}')
        e('v_lshrrev_b32 v22, 2, v116\nv_xor_b32 v22, v22, v117\nv_lshlrev_b32 v22, 4, v22\nv_lshl_add_u32 v22, v117, 10, v22')
        e(f'v_and_b32 v23, 3, v116\nv_lshl_add_u32 v22, v23, 2, v22\nv_add_u32 v22, {IMG}, v22')
        e('v_and_b32 v4, 7, v0\nv_lshlrev_b32 v4, 7, v4')
        e(f's_lshr_b32 s66, s37, 3\ns_lshl_b32 s66, s66, 15\ns_lshl_b32 s61, s38, 12\ns_add_u32 s66, s66, s61\ns_lshl_b32 s61, s30, 10\ns_add_u32 s66, s66, s61\ns_add_u32 s66, s66, {WS_FY}')
        self.lds_wait(2, self.o('ysign', 2), 12, 10, sleep=2)
        self.poll64(4, 's66', 6, sleep=self.o('ysleep', 6))
        self.stamp(9)
        e('s_mov_b32 m0, s63')
        e('buffer_load_dwordx4 v20, s[40:43], s62 offen sc1 lds')
        e('buffer_load_dwordx4 v21, s[40:43], s62 offen offset:1024 sc1 lds')
        e('s_waitcnt vmcnt(0)')
        self.lds_signal(9, 12, 10)
        self.lds_wait(9, 4, 12, 10)
        for ee in range(2):
            for q in range(4):
                e(f'ds_read_b32 v{80+ee*4+q}, v22 offset:{q*256+ee*128}')
        for ee in range(2):
            for q in range(4):
                y = 80 + ee * 4 + q
                d = 32 + ee * 16 + 2 * q
                e(f's_waitcnt lgkmcnt({7 - ee*4 - q})')
                e(f'v_lshlrev_b32 v30, 16, v{y}')
                e(f'v_and_b32 v31, 0xffff0000, v{y}')
                e(f'v_fmac_f32 v{d}, v{d+8}, v30')
                e(f'v_fmac_f32 v{d+1}, v{d+9}, v31')
        e('v_and_b32 v4, 7, v116')
        e('v_lshlrev_b32 v5, 1, v117')
        e('v_xor_b32 v4, v4, v5')
        e('v_lshlrev_b32 v4, 4, v4')
        e('v_lshl_add_u32 v4, v116, 8, v4')
        e(f'v_add_u32 v4, {65536}, v4')
        e('v_xor_b32 v5, 16, v4')
        e('v_add_u32 v6, 49152, v4')
        e('v_add_u32 v7, 49152, v5')
        self.srd(48, 24, 2097152)
        self.stamp(10)
        e('s_barrier')
        self.stamp(11)
        for ee in range(2):
            for kq in range(4):
                for h in range(2):
                    d = 128 + ((ee * 4 + kq) * 2 + h) * 4
                    e(f'ds_read_b128 v[{d}:{d+3}], v{4+h+2*ee} offset:{kq*12288}')
        for ee in range(2):
            e(f's_waitcnt lgkmcnt({8 - 8*ee})')
            dd = 32 + ee * 16
            for kq in range(4):
                d = 128 + (ee * 4 + kq) * 8
                for i in range(0, 8, 2):
                    e(f'v_pk_add_f32 v[{dd+i}:{dd+i+1}], v[{dd+i}:{dd+i+1}], v[{d+i}:{d+i+1}]')
            for q in range(4):
                e(f'v_cvt_pk_bf16_f32 v{dd+8+q}, v{dd+2*q}, v{dd+2*q+1}')
            of = {0:'',1:'sc1',2:'nt',3:'sc0 sc1',4:'sc0 sc1 nt'}[self.o('of',0)]
            e(f'buffer_store_dwordx4 v[{dd+8}:{dd+11}], v118, s[48:51], s{68+ee} offen {of}')
        e('s_or_b32 s60, s2, s30\ns_cmp_lg_u32 s60, 0\ns_cbranch_scc1 L_NORST')
        self.srd(56, 26, 256)
        e('v_mov_b32 v2, 0\nv_mov_b32 v3, 0')
        e('s_mov_b64 exec, 1')
        e('buffer_store_dwordx2 v[2:3], v2, s[56:59], 0 offen sc1')
        e('s_mov_b64 exec, -1')
        if self.o('padto',0):
            e('L_PADL:')
            e('s_memrealtime s[98:99]\ns_waitcnt lgkmcnt(0)\ns_sub_u32 s98, s98, s96')
            e(f's_cmp_lt_u32 s98, {self.o("padto",0)}\ns_cbranch_scc1 L_PADL')
        e('L_NORST:')
        if self.o('xccpad',0):
            e('s_getreg_b32 s60, hwreg(HW_REG_XCC_ID, 0, 4)')
            e('s_cmp_eq_u32 s60, s31\ns_cbranch_scc1 L_XOK')
            e('L_PADX:')
            e('s_memrealtime s[98:99]\ns_waitcnt lgkmcnt(0)\ns_sub_u32 s98, s98, s96')
            e(f's_cmp_lt_u32 s98, {self.o("xccpad",0)}\ns_cbranch_scc1 L_PADX')
            e('L_XOK:')
        self.dump_stamps()
        e('s_endpgm')

    def wd_setup(self):
        e = self.e
        self.srd(52, 22, 1835008)
        e('v_lshrrev_b32 v1, 3, v0')
        e('v_bfe_u32 v2, v0, 4, 1')
        e('v_lshlrev_b32 v2, 2, v2')
        e('v_and_b32 v3, 7, v0')
        e('v_xor_b32 v2, v2, v3')
        e('v_lshlrev_b32 v2, 4, v2')
        e('v_lshl_add_u32 v10, v1, 10, v2')
        e('s_mul_i32 s78, s77, 458752\ns_lshl_b32 s60, s38, 7\ns_add_u32 s78, s78, s60')
        e('s_mul_i32 s79, s77, 12288')
        rot = self.o('rot', 5)
        if rot == 0:
            e('s_mov_b32 s74, 0')
        elif rot == 1:
            e('s_mul_i32 s74, s38, 7\ns_lshr_b32 s74, s74, 1')
        elif rot == 5:
            e('s_mul_i32 s74, s31, 7\ns_lshr_b32 s74, s74, 1')
        elif rot == 6:
            e('s_add_u32 s74, s31, s38\ns_and_b32 s74, s74, 7\ns_mul_i32 s74, s74, 7\ns_lshr_b32 s74, s74, 1')
        elif rot == 3:
            e('s_and_b32 s74, s38, 1\ns_mul_i32 s74, s74, 14')
        elif rot == 4:
            e('s_and_b32 s74, s38, 3\ns_mul_i32 s74, s74, 7')
        else:
            e('s_mul_i32 s74, s38, 7\ns_lshr_b32 s74, s74, 1\ns_mul_i32 s60, s39, 7\ns_add_u32 s74, s74, s60')
            e('s_sub_u32 s60, s74, 28\ns_cmp_ge_u32 s74, 28\ns_cselect_b32 s74, s60, s74')
        e('s_mov_b32 s73, s74')
        e('v_bfe_u32 v1, v0, 2, 2')
        e('v_lshrrev_b32 v2, 5, v0')
        e('v_lshl_add_u32 v2, v2, 3, v1')
        e('v_bfe_u32 v3, v0, 4, 1')
        e('v_bfe_u32 v4, v0, 1, 1')
        e('v_lshl_add_u32 v3, v3, 1, v4')
        e('v_lshrrev_b32 v1, 1, v1')
        e('v_lshlrev_b32 v1, 2, v1')
        e('v_xor_b32 v3, v3, v1')
        e('v_lshlrev_b32 v3, 4, v3')
        e('v_and_b32 v4, 1, v0')
        e('v_lshl_add_u32 v3, v4, 3, v3')
        e('v_lshl_add_u32 v3, v2, 7, v3')
        e(f's_add_u32 s60, s79, {65536}')
        e('v_add_u32 v11, s60, v3')
        e('v_xor_b32 v12, 64, v11')
        e(f's_lshl_b32 s76, s77, 11\ns_add_u32 s76, s76, {L_TRK}')
        e('v_add_u32 v64, s76, v3')
        e('v_xor_b32 v65, 64, v64')
        e('v_lshlrev_b32 v66, 7, v0')

    def ntr(self):
        return self.o('ntr', 0)

    def wslot(self, i):
        s = (i - self.ntr()) % 12
        return (114688 + s * 2048, 49152 + s * 2048) if s < 6 else (65536 + (s - 6) * 2048, (s - 6) * 2048)

    def wd_dma(self, vm, i, trickle=False):
        e = self.e
        if trickle: sb, base = 's76', 0
        else: sb, base = 's79', self.wslot(i)[0]
        e('s_lshl_b32 s60, s73, 14\ns_add_u32 s60, s60, s78')
        e(f's_add_u32 m0, {sb}, {base}')
        e('s_add_u32 s61, s60, 8192')
        e('buffer_load_dwordx4 v10, s[52:55], s60 offen lds')
        e(f's_add_u32 m0, {sb}, {base + 1024}')
        e('s_add_u32 s73, s73, 1')
        e('buffer_load_dwordx4 v10, s[52:55], s61 offen lds')
        e('s_cmp_eq_u32 s73, 28\ns_cselect_b32 s73, 0, s73')
        return vm.issue(2)

    def wd_read(self, dst, i, trickle=False):
        if trickle: va, off = 64, 0
        else: va, off = 11, self.wslot(i)[1]
        return [f'ds_read_b64_tr_b16 v[{dst+4*ct+2*t}:{dst+4*ct+2*t+1}], v{va+ct} offset:{off + t*512}' for ct in range(2) for t in range(2)]

    def wd_pf(self, vm, q, wide=False):
        e = self.e
        sh = 1 if wide else 2
        e(f's_lshr_b32 s60, s32, {sh}\ns_add_u32 s60, s60, {q * (14 if wide else 7)}\ns_add_u32 s60, s60, s74')
        e('s_sub_u32 s61, s60, 28\ns_cmp_ge_u32 s60, 28\ns_cselect_b32 s60, s61, s60')
        e(f's_lshl_b32 s60, s60, 14\ns_and_b32 s61, s32, {(1 << sh) - 1}\ns_lshl_b32 s61, s61, {14 - sh}\ns_add_u32 s60, s60, s61')
        e('s_mul_i32 s61, s77, 458752\ns_add_u32 s60, s60, s61')
        if not wide: e('s_mov_b32 exec_hi, 0')
        e('buffer_load_dword v67, v66, s[52:55], s60 offen')
        if not wide: e('s_mov_b64 exec, -1')
        return vm.issue()

    WD0 = 80
    def wd_tail(self, vm, tok, dyn=False, npf=4, moved=0):
        e = self.e
        Tbig = self.o('wdT', 6); Tsm = self.o('wdS', 2)
        a, b = self.ntr() + self.o('wdA', 12), self.ntr() + self.o('wdB', 17)
        n0 = len(tok)
        waited = moved - 1
        def move(upto):
            nonlocal moved, waited
            while moved < min(upto, 16):
                if moved > waited: vm.wait(e, tok[moved]); waited = moved
                for r in self.wd_read(self.WD0 + 8 * moved, moved): e(r)
                moved += 1
                if moved % 3 == 0: e('s_waitcnt lgkmcnt(4)')
        for i in range(n0, 28):
            T = Tsm if (dyn and a <= i < b) else Tbig
            if dyn and i == b and self.o('wdW', 1):
                self.lds_wait(10, 4, 68, 69, sleep=1)
                while 0 < npf < 4:
                    self.wd_pf(vm, npf); npf += 1
            if i - T >= 0:
                move(i - T + 1)
                if i - T > waited: vm.wait(e, tok[i - T]); waited = i - T
            move(i - 12 + 1)
            if i >= 12: e('s_waitcnt lgkmcnt(0)')
            tok[i] = self.wd_dma(vm, i)
        move(16)

    def g1_helper(self):
        e = self.e
        vm = VM()
        e('s_and_b32 s62, s77, 1')
        e('s_lshr_b32 s63, s77, 1')
        e('v_lshrrev_b32 v1, 3, v0')
        e('v_lshrrev_b32 v2, 4, v0')
        e('v_and_b32 v3, 7, v0')
        e('s_lshl_b32 s60, s62, 2')
        e('v_add_u32 v4, s60, v2')
        e('v_xor_b32 v4, v4, v3')
        e('v_lshlrev_b32 v4, 4, v4')
        e('v_lshl_add_u32 v13, v1, 10, v4')
        e('v_and_b32 v2, 1, v2')
        e('v_lshlrev_b32 v2, 1, v2')
        e('v_add_u32 v2, s60, v2')
        e('v_xor_b32 v2, v2, v3')
        e('v_lshlrev_b32 v2, 4, v2')
        e('v_mul_u32_u24 v1, 3584, v1')
        e('v_add_u32 v14, v1, v2')
        e('s_lshl_b32 s64, s34, 18\ns_lshl_b32 s60, s77, 13\ns_add_u32 s64, s64, s60')
        e('s_mul_i32 s65, s63, 28672\ns_lshl_b32 s60, s35, 7\ns_add_u32 s65, s65, s60')
        e('s_lshl_b32 s66, s77, 10')
        e('s_lshl_b32 s67, s62, 13\ns_lshl_b32 s60, s63, 10\ns_add_u32 s67, s67, s60\ns_add_u32 s67, s67, 32768')
        e('s_mov_b32 s50, 1835008\ns_mov_b32 s51, 0x20000')
        self.kwait()
        e('s_cmp_eq_u32 s62, 0')
        e('s_cselect_b32 s48, s18, s20\ns_cselect_b32 s49, s19, s21')
        def stage(ls):
            sl = SLOT[ls % 3]
            e(f's_add_u32 s60, s36, {ls}\ns_and_b32 s60, s60, 7')
            e('s_lshl_b32 s68, s60, 7\ns_add_u32 s68, s68, s64')
            e('s_mul_i32 s69, s60, 229376')
            e(f's_add_u32 m0, s67, {sl}')
            e('s_add_u32 s69, s69, s65')
            for j in range(4):
                e('buffer_load_dwordx4 v14, s[48:51], s69 offen lds')
                e(f's_add_u32 m0, s66, {sl + 2*j*4096}')
                e('s_add_u32 s69, s69, 57344')
                e('buffer_load_dwordx4 v13, s[44:47], s68 offen lds')
                e(f's_add_u32 m0, s66, {sl + (2*j+1)*4096}')
                e('s_add_u32 s68, s68, 32768')
                e('buffer_load_dwordx4 v13, s[44:47], s68 offen lds')
                if j < 3:
                    e(f's_add_u32 m0, s67, {sl + (j+1)*2048}')
                    e('s_add_u32 s68, s68, 32768')
            return vm.issue(12)
        tok = {}
        tok[0] = stage(0)
        self.stamp(9)
        self.srd(56, 26, 256)
        self.w_tr_addr(15)
        e('s_lshl_b32 s60, s77, 5')
        e('v_xor_b32 v15, s60, v15')
        e('v_add_u32 v15, 32768, v15')
        for i in range(4): e(f'v_mov_b32 v{48+i}, 0x3f803f80')
        e('v_mov_b32 v68, 0\nv_lshlrev_b32 v1, 2, v0')
        e(f'ds_write_b32 v1, v68 offset:{L_CNT}')
        e('s_waitcnt lgkmcnt(0)')
        self.wd_setup()
        tok[1] = stage(1)
        wtok = {}
        npf = 0
        for ls in range(7):
            vm.wait(e, tok[ls])
            e('s_barrier')
            if ls in (0, 2, 4, 6): self.stamp(1 + ls // 2)
            if ls == 7: self.stamp(11)
            if ls == 8: self.stamp(12)
            if ls == 1:
                e('v_mov_b32 v9, 0')
                e('buffer_load_dwordx2 v[54:55], v9, s[56:59], 0 offen sc1'); vm.issue()
            NT = self.ntr()
            it = ls - (6 - NT)
            if 1 <= it <= NT:
                vm.wait(e, wtok[it - 1])
                for r in self.wd_read(self.WD0 + 8 * (it - 1), it - 1, trickle=True): e(r)
                e('s_waitcnt lgkmcnt(0)')
            if 0 <= it < NT: wtok[it] = self.wd_dma(vm, it, trickle=True)
            if 0 <= ls <= 5: tok[ls + 2] = stage(ls + 2)
            if ls == 6: self.gran_issue(); tokG = vm.issue(5)
            if ls < 4:
                L = e.newlabel('NOCS')
                e(f's_cmp_lg_u32 s39, {ls}\ns_cbranch_scc1 {L}')
                e(f'v_add_u32 v9, {SLOT[ls % 3]}, v15')
                for ks in range(4):
                    for t in range(2):
                        e(f'ds_read_b64_tr_b16 v[{32+4*ks+2*t}:{33+4*ks+2*t}], v9 offset:{(16*ks+4*t)*128}')
                e('s_waitcnt lgkmcnt(0)')
                e('v_mfma_f32_32x32x16_bf16 v[16:31], v[48:51], v[32:35], 0')
                for ks in range(1, 4):
                    e(f'v_mfma_f32_32x32x16_bf16 v[16:31], v[48:51], v[{32+4*ks}:{35+4*ks}], v[16:31]')
                e('v_mov_b32 v52, v16')
                e(f'{L}:')
            if ls == 3:
                e('v_readfirstlane_b32 s70, v54\nv_readfirstlane_b32 s71, v55')
                e('s_cmp_lg_u32 s71, 0\ns_cbranch_scc1 L_HAVEN')
                self.get_nonce_blocking(54)
                e('L_HAVEN:')
                e(f's_xor_b32 s71, s70, {TAGX}')
                e('s_add_u32 s60, s36, s39\ns_and_b32 s60, s60, 7\ns_lshl_b32 s61, s35, 3\ns_add_u32 s60, s60, s61')
                e(f's_lshl_b32 s60, s60, 10\ns_lshl_b32 s61, s77, 8\ns_add_u32 s60, s60, s61\ns_add_u32 s60, s60, {WS_CS}')
                e('v_mov_b32 v53, s70')
                e('v_lshlrev_b32 v9, 3, v0')
                e('s_mov_b32 exec_hi, 0')
                e('buffer_store_dwordx2 v[52:53], v9, s[40:43], s60 offen sc1'); vm.issue()
                e('s_mov_b64 exec, -1')
            for _ in range(int(str(self.o('pfsch', 10000000))[1 + ls])):
                self.wd_pf(vm, npf); npf += 1
            if ls == 5 and self.o('pfssm', 1):
                L = e.newlabel('NS')
                e(f's_cmp_lg_u32 s77, 0\ns_cbranch_scc1 {L}')
                self.srd(56, 12, 2097152)
                e('s_lshl_b32 s60, s2, 13')
                e('buffer_load_dword v67, v66, s[56:59], s60 offen')
                e(f'{L}:')
            if ls == 5: pass
        vm.wait(e, tok[7])
        self.lds_signal(3, 68, 69)
        self.stamp(11)
        for i in range(NT, NT + self.o('w6', 4)): wtok[i] = self.wd_dma(vm, i)
        vm.wait(e, tokG)
        self.gran_check_build()
        e('s_waitcnt lgkmcnt(0)')
        self.lds_signal(7, 68, 69)
        self.stamp(12)
        for i in range(len(wtok), NT + 6): wtok[i] = self.wd_dma(vm, i)
        self.lds_wait(4, 4, 68, 69, sleep=1)
        self.wd_tail(vm, wtok, dyn=True, npf=npf, moved=NT)

    def gran_issue(self):
        e = self.e
        e(f's_lshl_b32 s60, s34, 11\ns_lshl_b32 s61, s77, 9\ns_add_u32 s60, s60, s61\ns_add_u32 s60, s60, {WS_STATS}')
        e('v_lshlrev_b32 v9, 3, v0')
        e('buffer_load_dwordx2 v[16:17], v9, s[40:43], s60 offen sc1')
        e('v_and_b32 v8, 31, v0\nv_lshlrev_b32 v8, 3, v8\nv_lshrrev_b32 v7, 5, v0\nv_lshl_add_u32 v7, v7, 10, v8')
        e(f's_lshl_b32 s60, s35, 13\ns_lshl_b32 s61, s77, 8\ns_add_u32 s60, s60, s61\ns_add_u32 s60, s60, {WS_CS}')
        e('s_add_u32 s61, s60, 4096')
        e('buffer_load_dwordx2 v[18:19], v7, s[40:43], s60 offen sc1')
        e('buffer_load_dwordx2 v[20:21], v7, s[40:43], s60 offen offset:2048 sc1')
        e('buffer_load_dwordx2 v[22:23], v7, s[40:43], s61 offen sc1')
        e('buffer_load_dwordx2 v[24:25], v7, s[40:43], s61 offen offset:2048 sc1')

    def gran_check_build(self):
        e = self.e
        L = e.newlabel('GR'); D = e.newlabel('GRD')
        e(f's_mov_b32 s72, {POLL_LIMIT}')
        e(f'{L}:')
        e('v_cmp_ne_u32 vcc, s70, v17')
        for r in (19, 21, 23, 25):
            e(f'v_cmp_ne_u32 s[60:61], s70, v{r}')
            e('s_or_b64 vcc, vcc, s[60:61]')
        e(f's_cbranch_scc0 {D}')
        e('s_sleep 4')
        self.gran_issue()
        e('s_waitcnt vmcnt(0)')
        e('s_sub_u32 s72, s72, 1\ns_cmp_lg_u32 s72, 0')
        e(f's_cbranch_scc1 {L}')
        e(f'{D}:')
        e('v_add_f32 v18, v18, v20\nv_add_f32 v22, v22, v24\nv_add_f32 v18, v18, v22')
        e('v_mov_b32 v19, v18')
        e('v_permlane32_swap_b32 v18, v19')
        e('v_add_f32 v18, v18, v19')
        e('v_cvt_pk_bf16_f32 v19, v18, v18')
        e('v_lshlrev_b32 v20, 16, v19')
        e('v_sub_f32 v20, v18, v20')
        e('v_cvt_pk_bf16_f32 v28, v18, v20')
        e('v_mov_b32 v29, 0')
        e('v_cmp_gt_u32 vcc, 32, v0')
        e('v_cndmask_b32 v28, v29, v28, vcc')
        e('v_lshlrev_b32 v8, 2, v0\ns_lshl_b32 s60, s77, 8\nv_add_u32 v8, s60, v8')
        e(f'ds_write_b32 v8, v28 offset:{L_CS}')
        e(f'ds_write_b32 v8, v16 offset:{L_ST}')
        e('v_mov_b32 v20, s70')
        e(f'ds_write_b32 v29, v20 offset:{L_NONCE}')

    def g2(self):
        e = self.e
        e('L_G2:')
        e('; ---- GEMM2 ----')
        ACC = 16; W = self.WD0
        self.stamp(5)
        e('v_mov_b32 v3, 0')
        e('v_min_u32 v4, 6, v0\nv_lshlrev_b32 v4, 7, v4')
        e(f's_lshl_b32 s61, s37, 2\ns_add_u32 s61, s61, s77\ns_lshl_b32 s61, s61, 10\ns_add_u32 s61, s61, {WS_FH}')
        e(f's_mul_i32 s62, s37, 224\ns_mul_i32 s63, s77, 28\ns_add_u32 s62, s62, s63\ns_lshl_b32 s62, s62, 10\ns_add_u32 s62, s62, {WS_HS}')
        e('v_lshlrev_b32 v8, 4, v0')
        e(f'v_add_u32 v9, {112*1024}, v8')
        e('s_mov_b32 s73, s74')
        self.poll64(4, 's61', 6, sleep=self.o('hsleep', 1))
        self.stamp(7)
        if 'g2st' in self.opt: e('s_memrealtime s[98:99]\ns_waitcnt lgkmcnt(0)\ns_sub_u32 s92, s98, s94\ns_mul_i32 s92, s92, 10\ns_add_u32 s92, s92, s80')
        vm = VM()
        free = [208, 216, 224, 232, 240, 248]
        D = self.o('hD', 6)
        def hload(i):
            d = free.pop(0)
            e('s_lshl_b32 s60, s73, 10\ns_add_u32 s60, s60, s62\ns_add_u32 s73, s73, 1')
            lf = '' if 'hldplain' in self.opt else 'sc1'
            e(f'buffer_load_dwordx4 v[{d}:{d+3}], v8, s[40:43], s60 offen {lf}')
            e(f'buffer_load_dwordx4 v[{d+4}:{d+7}], v9, s[40:43], s60 offen {lf}')
            e('s_cmp_eq_u32 s73, 28\ns_cselect_b32 s73, 0, s73')
            return (vm.issue(2), d)
        tok = {}
        nload = 0
        while nload < min(D, 6):
            tok[nload] = hload(nload); nload += 1
        wreg = {i: W + 8 * i for i in range(16)}
        for i in range(28):
            pre = []
            if 16 <= i + 1 < 28:
                wreg[i + 1] = free.pop(0)
                pre = self.wd_read(wreg[i + 1], i + 1)
            vm.wait(e, tok[i][0])
            if i >= 16: e('s_waitcnt lgkmcnt(0)')
            wd = wreg[i]; hh = tok[i][1]
            k = 0
            for tt in range(2):
                for ct in range(2):
                    a = ACC + (ct * 2 + tt) * 16
                    c = '0' if i == 0 else f'v[{a}:{a+15}]'
                    if 'g2nomf' not in self.opt: e(f'v_mfma_f32_32x32x16_bf16 v[{a}:{a+15}], v[{wd+4*ct}:{wd+4*ct+3}], v[{hh+4*tt}:{hh+4*tt+3}], {c}')
                    if k < len(pre): e(pre[k]); k += 1
            free.append(hh); free.append(wd)
            if 'g2st' in self.opt and i in (0, 3, 7, 11, 15, 21): self.stamp({0: 1, 3: 2, 7: 3, 11: 4, 15: 9, 21: 11}[i])
            while nload < 28 and nload - i - 1 < D and len(free) > 1:
                tok[nload] = hload(nload); nload += 1
            if i == self.o('ysig', 12): self.lds_signal(2, 3, 5)
        self.stamp(8)
        e('v_and_b32 v3, 31, v0\nv_lshrrev_b32 v4, 5, v0\nv_and_b32 v5, 7, v0\nv_xor_b32 v4, v4, v5\nv_lshlrev_b32 v4, 4, v4\nv_lshl_add_u32 v4, v3, 8, v4')
        e(f's_add_u32 s60, s79, 65536')
        e('v_add_u32 v4, s60, v4')
        for q in range(1, 4): e(f'v_xor_b32 v{4+q}, {q*32}, v4')
        for tt in range(2):
            for ct in range(2):
                a = ACC + (ct * 2 + tt) * 16
                for q in range(4):
                    e(f'ds_write_b128 v{4+q}, v[{a+4*q}:{a+4*q+3}] offset:{tt*49152 + ct*128}')
        e('s_waitcnt lgkmcnt(0)')
        self.stamp(10)
        e('s_barrier')
        self.dump_stamps()
        e('s_endpgm')

    def spare(self):
        e = self.e
        e('L_SPARE:')
        e('v_lshlrev_b32 v8, 4, v0')
        e('s_lshl_b32 s63, s37, 6\ns_lshl_b32 s60, s30, 3\ns_add_u32 s63, s63, s60')
        e('s_lshl_b32 s64, s63, 10')
        e('s_add_u32 s65, s64, 4096')
        for j in range(3):
            e(f's_sub_u32 s60, s64, {(3-j)*1024}')
            e(f'v_add_u32 v{10+j}, s60, v8')
        e('v_lshlrev_b32 v9, 6, v0')
        self.kwait()
        Q = 16; K = 48; V = 92; SH = 124
        for j in range(8):
            e(f'buffer_load_dwordx4 v[{Q+4*j}:{Q+4*j+3}], v8, s[44:47], s{64 + j//4} offen offset:{(j%4)*1024}')
        self.srd(48, 6, 2097152)
        self.srd(52, 8, 2097152)
        self.srd(56, 26, 256)
        e('s_barrier')
        for j in range(8):
            e(f'buffer_load_dwordx4 v[{K+12+4*j}:{K+12+4*j+3}], v8, s[48:51], s{64 + j//4} offen offset:{(j%4)*1024}')
        U = 140; S = 204; T = 220; M = 224
        def allreduce(regs):
            for mod in ('quad_perm:[1,0,3,2]', 'quad_perm:[2,3,0,1]', 'row_half_mirror', 'row_mirror'):
                for r in regs:
                    e(f'v_add_f32_dpp v{r}, v{r}, v{r} {mod} row_mask:0xf bank_mask:0xf')
            for sw in ('v_permlane16_swap_b32', 'v_permlane32_swap_b32'):
                for r in regs: e(f'v_mov_b32 v{r+8}, v{r}')
                for r in regs: e(f'{sw} v{r}, v{r+8}')
                for r in regs: e(f'v_add_f32 v{r}, v{r}, v{r+8}')
        for j in range(8):
            e(f's_waitcnt vmcnt({15 - j})')
            for d in range(4):
                e(f'v_lshlrev_b32 v{U+8*j+2*d}, 16, v{Q+4*j+d}')
                e(f'v_and_b32 v{U+8*j+2*d+1}, 0xffff0000, v{Q+4*j+d}')
            u = U + 8 * j
            e(f'v_pk_add_f32 {pr(T)}, {pr(u)}, {pr(u+2)}')
            e(f'v_pk_add_f32 {pr(T+2)}, {pr(u+4)}, {pr(u+6)}')
            e(f'v_pk_add_f32 {pr(T)}, {pr(T)}, {pr(T+2)}')
            e(f'v_add_f32 v{S+j}, v{T}, v{T+1}')
        allreduce([S + j for j in range(8)])
        e('v_mov_b32 v238, 0')
        e('buffer_load_dwordx2 v[236:237], v238, s[56:59], 0 offen sc1')
        self.srd(56, 10, 4096)
        for j in range(8):
            e(f'buffer_load_dwordx4 v[{V+4*j}:{V+4*j+3}], v8, s[52:55], s{64 + j//4} offen offset:{(j%4)*1024}')
        for j in range(3):
            e(f'buffer_load_dwordx4 v[{K+4*j}:{K+4*j+3}], v{10+j}, s[48:51], 0 offen')
        for j in range(4):
            e(f'buffer_load_dwordx4 v[{SH+4*j}:{SH+4*j+3}], v9, s[56:59], 0 offen offset:{j*16}')
        for j in range(8): e(f'v_mul_f32 v{M+j}, {f2u(1/512):#x}, v{S+j}')
        for j in range(8):
            u = U + 8 * j
            for i in range(8): e(f'v_sub_f32 v{u+i}, v{u+i}, v{M+j}')
            e(f'v_pk_mul_f32 {pr(T)}, {pr(u)}, {pr(u)}')
            for i in (2, 4, 6): e(f'v_pk_fma_f32 {pr(T)}, {pr(u+i)}, {pr(u+i)}, {pr(T)}')
            e(f'v_add_f32 v{S+j}, v{T}, v{T+1}')
        allreduce([S + j for j in range(8)])
        e(f'v_mov_b32 v232, v{M}\nv_mov_b32 v233, v{S}')
        for j in range(1, 8):
            e(f'v_cmp_eq_u32 vcc, {j}, v0')
            e(f'v_cndmask_b32 v232, v232, v{M+j}, vcc')
            e(f'v_cndmask_b32 v233, v233, v{S+j}, vcc')
        e(f'v_mul_f32 v233, {f2u(1/512):#x}, v233')
        e('v_cvt_pk_bf16_f32 v233, v233, v233\nv_lshlrev_b32 v233, 16, v233')
        e(f'v_add_f32 v233, {f2u(1e-5):#x}, v233')
        e('v_cvt_pk_bf16_f32 v233, v233, v233\nv_lshlrev_b32 v233, 16, v233')
        e('v_sqrt_f32 v233, v233')
        e('v_cvt_pk_bf16_f32 v234, v232, v233')
        self.stamp(1)
        e('s_waitcnt vmcnt(15)')
        e('v_readfirstlane_b32 s70, v236\nv_readfirstlane_b32 s71, v237')
        e('s_cmp_lg_u32 s71, 0\ns_cbranch_scc1 L_SPN')
        self.srd(56, 26, 256)
        self.get_nonce_blocking(236)
        e('L_SPN:')
        e(f's_xor_b32 s71, s70, {TAGX}')
        e('v_mov_b32 v235, s70')
        e('v_lshlrev_b32 v1, 3, v0')
        e(f's_lshl_b32 s60, s63, 3\ns_add_u32 s60, s60, {WS_STATS}')
        e('s_mov_b64 exec, 0xff')
        e('buffer_store_dwordx2 v[234:235], v1, s[40:43], s60 offen sc1')
        e('s_mov_b64 exec, -1')
        self.stamp(2)
        e('s_waitcnt vmcnt(1)')
        KU = 140; VU = 162; WU = 178; R = 186; O = 204
        e('s_sub_u32 s60, 7, s30')
        e('v_and_b32 v1, 7, v0\nv_xor_b32 v1, s60, v1\nv_lshlrev_b32 v1, 4, v1\nv_lshl_add_u32 v1, v0, 10, v1\nv_add_u32 v1, 65536, v1')
        for d in range(4):
            for j in range(11):
                e(f'v_lshlrev_b32 v{KU+2*j}, 16, v{K+4*j+d}')
                e(f'v_and_b32 v{KU+2*j+1}, 0xffff0000, v{K+4*j+d}')
            for cc in range(2):
                s_ = SH + 4 * d + 2 * cc
                e(f'v_lshlrev_b32 v{WU+0+cc}, 16, v{s_}')
                e(f'v_and_b32 v{WU+2+cc}, 0xffff0000, v{s_}')
                e(f'v_lshlrev_b32 v{WU+4+cc}, 16, v{s_+1}')
                e(f'v_and_b32 v{WU+6+cc}, 0xffff0000, v{s_+1}')
            for j in range(8): e(f'v_pk_mul_f32 {pr(R+2*j)}, {pr(KU+2*j)}, {pr(WU+6)}')
            for tap in (2, 1, 0):
                for j in range(8): e(f'v_pk_fma_f32 {pr(R+2*j)}, {pr(KU+2*(j+3-tap))}, {pr(WU+2*tap)}, {pr(R+2*j)}')
            for j in range(8):
                e(f'v_lshlrev_b32 v{VU+2*j}, 16, v{V+4*j+d}')
                e(f'v_and_b32 v{VU+2*j+1}, 0xffff0000, v{V+4*j+d}')
            for j in range(8): e(f'v_pk_mul_f32 {pr(R+2*j)}, {pr(R+2*j)}, {pr(VU+2*j)}')
            o = O + (d & 1) * 8
            for cc in range(2):
                for q in range(4):
                    e(f'v_cvt_pk_bf16_f32 v{o+4*cc+q}, v{R+2*(7-2*q)+cc}, v{R+2*(6-2*q)+cc}')
                e(f'ds_write_b128 v1, v[{o+4*cc}:{o+4*cc+3}] offset:{(2*d+cc)*128}')
        e('v_mov_b32 v68, 0\nv_lshlrev_b32 v2, 2, v0')
        e(f'ds_write_b32 v2, v68 offset:{L_CNT}')
        e('s_waitcnt lgkmcnt(0)')
        self.stamp(4)
        e('s_barrier')
        e('s_lshl_b32 s60, s30, 13\ns_add_u32 s60, s60, 65536')
        e('v_add_u32 v1, s60, v8')
        for i in range(8): e(f'ds_read_b128 v[{16+4*i}:{19+4*i}], v1 offset:{i*1024}')
        e('v_lshrrev_b32 v2, 3, v0\nv_lshlrev_b32 v2, 12, v2\nv_and_b32 v3, 7, v0\nv_lshl_add_u32 v2, v3, 4, v2')
        e(f's_lshl_b32 s60, s30, 18\ns_lshl_b32 s61, s37, 7\ns_sub_u32 s60, s60, s61\ns_add_u32 s60, s60, {WS_KVT + 3968}')
        for i in range(8):
            e(f'v_xor_b32 v3, {i*16}, v2')
            e(f's_waitcnt lgkmcnt({7-i})')
            e(f'buffer_store_dwordx4 v[{16+4*i}:{19+4*i}], v3, s[40:43], s60 offen sc1')
            e('s_add_u32 s60, s60, 32768')
        e('s_barrier')
        e(f's_lshl_b32 s60, s30, 5\ns_add_u32 s60, s60, s37\ns_lshl_b32 s60, s60, 5\ns_add_u32 s60, s60, {WS_FKV}')
        e('s_waitcnt vmcnt(0)')
        self.store_flag('s60', 4)
        self.stamp(3)
        e('s_cmp_ge_u32 s30, 4\ns_cbranch_scc1 L_SPH')
        self.conv_loads_h()
        self.kvflag_addr()
        e('s_branch L_KVPOLL')
        e('L_SPH:')
        vm = VM()
        self.wd_setup()
        wtok = {}
        for i in range(4): wtok[i] = self.wd_dma(vm, i)
        self.wd_tail(vm, wtok)
        e('s_branch L_G2')

    def build(self):
        self.prologue()
        self.g1_helper()
        self.g2()
        self.g1_mfma()
        self.conv()
        self.spare()
        self.e('L_END:')
        body = self.e.text()
        hdr = open('parallel_sum__ssm_conv_h3__glu_gated_geglu__prompt.s.ref').read().split('; Override launch')[0]
        s = hdr + f'; @launch grid=(256,1,1) block=(512,1,1) lds={LDS_TOTAL}\n'
        s += f'.amdgcn_target "amdgcn-amd-amdhsa--gfx950"\n.text\n.globl {NAME}\n.p2align 8\n.type {NAME},@function\n{NAME}:\n'
        s += body + '    s_endpgm\n'
        s += f'''.section .rodata,"a"
.p2align 6
.amdhsa_kernel {NAME}
  .amdhsa_next_free_vgpr 256
  .amdhsa_next_free_sgpr 102
  .amdhsa_accum_offset 256
  .amdhsa_group_segment_fixed_size 0
  .amdhsa_kernarg_size 104
  .amdhsa_user_sgpr_count 2
  .amdhsa_user_sgpr_kernarg_segment_ptr 1
  .amdhsa_system_sgpr_workgroup_id_x 1
.end_amdhsa_kernel
'''
        return s

if __name__ == '__main__':
    out = sys.argv[1]
    stamps = 'stamps' in sys.argv[2:]
    open(out, 'w').write(Gen(stamps=stamps, opt=set(sys.argv[2:])).build())
```

```python
import sys, struct
from emit import Em

NAME = 'parallel_sum__ssm_conv_h3__glu_gated_geglu__prompt_kernel'

WS_EPOCH = 0
WS_STATS = 0x10000
WS_CS = 0x20000
WS_FKV = 0x60000
WS_FH = 0xA0000
WS_FY = 0xC0000
WS_FH2 = 0xE0000
WS_KVT = 0x100000
WS_YS = 0x300000
WS_HS = 0x500000
HJ = 64 * 28 * 1024
WS_DBG = 0xD00000
WS_SIZE = 0xE00000

SLOT = [65536, 16384, 114688]
L_CS = 0
L_ST = 1024
L_NONCE = 2048
L_CNT = 2176
L_TRK = 4096
L_KVI = 4096
XB = 4096
IMG = 39424
HO_OFF = 4160
KV_OFF = 8448
CH_SZ = 13056
LDS_TOTAL = 163840

def f2u(x):
    return struct.unpack('<I', struct.pack('<f', x))[0]

K1C = -2.0 * 1.4426950408889634 * 0.7978845608028654
K2C = K1C * 0.044715
TAGX = 0x5bd1e995
POLL_LIMIT = 100000
pr = lambda x: f'v[{x}:{x+1}]'

class VM:
    def __init__(self): self.n = 0
    def issue(self, k=1):
        self.n += k; return self.n
    def wait(self, e, tok):
        c = self.n - tok
        assert 0 <= c <= 63, c
        e(f's_waitcnt vmcnt({c})')

class Gen:
    def __init__(self, stamps=False, opt=None):
        self.e = Em()
        self.stamps = stamps
        self.opt = opt or set()

    def o(self, name, default):
        for x in self.opt:
            if x.startswith(name + '='): return int(x.split('=')[1])
        return default

    def srd(self, d, ptr, size):
        e = self.e
        e(f's_mov_b32 s{d}, s{ptr}\ns_mov_b32 s{d+1}, s{ptr+1}\ns_mov_b32 s{d+2}, {size}\ns_mov_b32 s{d+3}, 0x20000')

    def stamp(self, k):
        if getattr(self, 'nostamp', False) and k != 15: return
        if self.stamps:
            ins = 's_memrealtime' if 'rt' in self.opt else 's_memtime'
            self.e(f'{ins} s[98:99]\ns_waitcnt lgkmcnt(0)\ns_mov_b32 s{80+k}, s98')

    def kwait(self):
        e = self.e
        e('s_waitcnt lgkmcnt(0)')
        if self.stamps:
            e(('s_mov_b32 s80, s96' if 'rt' in self.opt else 's_mov_b32 s80, s98') + '\ns_mov_b32 s94, s96')
            for k in range(1, 14): e(f's_mov_b32 s{80+k}, 0')
        self.srd(44, 4, 2097152)
        self.srd(40, 28, WS_SIZE)

    def dump_stamps(self):
        if not self.stamps: return
        e = self.e
        e('s_waitcnt vmcnt(0) lgkmcnt(0)')
        self.stamp(15)
        e('s_memrealtime s[98:99]\ns_waitcnt lgkmcnt(0)\ns_mov_b32 s93, s98')
        e('s_lshl_b32 s60, s2, 3\ns_add_u32 s60, s60, s30\ns_lshl_b32 s60, s60, 6\ns_add_u32 s60, s60, %d' % WS_DBG)
        e('v_mov_b32 v1, 0')
        for g in range(4):
            for i in range(4):
                e(f'v_mov_b32 v{4+i}, s{80+4*g+i}')
            e(f'buffer_store_dwordx4 v[4:7], v1, s[40:43], s60 offen offset:{16*g}')
        e('s_waitcnt vmcnt(0)')

    def poll64(self, vaddr, soff, t, sleep=1):
        e = self.e
        L = e.newlabel('POLL'); D = e.newlabel('POLLD')
        e(f's_mov_b32 s72, {POLL_LIMIT}')
        e(f'{L}:')
        e(f'buffer_load_dwordx2 v[{t}:{t+1}], v{vaddr}, s[40:43], {soff} offen sc1')
        e('s_waitcnt vmcnt(0)')
        e(f'v_cmp_ne_u64 vcc, s[70:71], v[{t}:{t+1}]')
        e(f's_cbranch_vccz {D}')
        e(f's_sleep {sleep}')
        e('s_sub_u32 s72, s72, 1')
        e('s_cmp_lg_u32 s72, 0')
        e(f's_cbranch_scc1 {L}')
        e(f'{D}:')

    def get_nonce_blocking(self, t):
        e = self.e
        L = e.newlabel('NON'); D = e.newlabel('NOND')
        e(f's_mov_b32 s72, {POLL_LIMIT}')
        e(f'v_mov_b32 v{t+2}, 0')
        e(f'{L}:')
        e(f'buffer_load_dwordx2 v[{t}:{t+1}], v{t+2}, s[56:59], 0 offen sc1')
        e('s_waitcnt vmcnt(0)')
        e(f'v_readfirstlane_b32 s70, v{t}')
        e(f'v_readfirstlane_b32 s71, v{t+1}')
        e('s_cmp_lg_u32 s71, 0')
        e(f's_cbranch_scc1 {D}')
        e('s_sleep 4')
        e('s_sub_u32 s72, s72, 1')
        e('s_cmp_lg_u32 s72, 0')
        e(f's_cbranch_scc1 {L}')
        e(f'{D}:')
        e(f's_xor_b32 s71, s70, {TAGX}')

    def store_flag(self, soff_reg, t, fl='sc1'):
        e = self.e
        e(f'v_mov_b32 v{t}, s70\nv_mov_b32 v{t+1}, s71\nv_mov_b32 v{t+2}, 0')
        e('s_mov_b64 exec, 1')
        e(f'buffer_store_dwordx2 v[{t}:{t+1}], v{t+2}, s[40:43], {soff_reg} offen {fl}')
        e('s_mov_b64 exec, -1')

    def lds_signal(self, k, vz, vt):
        e = self.e
        e(f'v_mov_b32 v{vt}, 1')
        e('s_mov_b64 exec, 1')
        e(f'ds_add_u32 v{vz}, v{vt} offset:{L_CNT + 4*k}')
        e('s_mov_b64 exec, -1')

    def lds_wait(self, k, n, vz, vt, sleep=0):
        e = self.e
        L = e.newlabel('SB')
        e(f's_mov_b32 s72, {POLL_LIMIT*8}')
        e(f'{L}:')
        if sleep: e(f's_sleep {sleep}')
        e(f'ds_read_b32 v{vt}, v{vz} offset:{L_CNT + 4*k}')
        e('s_sub_u32 s72, s72, 1')
        e('s_waitcnt lgkmcnt(0)')
        e(f'v_readfirstlane_b32 s60, v{vt}')
        e('s_cmp_eq_u32 s72, 0')
        e(f's_cbranch_scc1 {L}_D')
        e(f's_cmp_lt_u32 s60, {n}')
        e(f's_cbranch_scc1 {L}')
        e(f'{L}_D:')

    def prologue(self):
        e = self.e
        e('s_load_dwordx16 s[4:19], s[0:1], 0')
        e('s_load_dwordx8 s[20:27], s[0:1], 64')
        e('s_load_dwordx2 s[28:29], s[0:1], 96')
        if self.stamps:
            e('s_memtime s[98:99]\ns_memrealtime s[96:97]')
        if self.o('padto',0) or self.o('xccpad',0): e('s_memrealtime s[96:97]')
        e('s_cmp_ge_u32 s2, 256')
        e('s_cbranch_scc1 L_END')
        e('v_lshrrev_b32 v1, 6, v0')
        e('v_and_b32 v0, 63, v0')
        e('v_readfirstlane_b32 s30, v1')
        e('s_and_b32 s31, s2, 7')
        e('s_lshr_b32 s32, s2, 3')
        e('s_cmp_lg_u32 s30, 0')
        e('s_cbranch_scc1 L_NOPF')
        e('s_getpc_b64 s[60:61]')
        e('L_PC:')
        e('v_lshlrev_b32 v1, 5, v0')
        e('v_add_u32 v1, s32, v1')
        e('v_lshlrev_b32 v1, 7, v1')
        e('v_cmp_gt_u32 vcc, L_END-L_PC, v1')
        e('s_and_saveexec_b64 s[62:63], vcc')
        e('s_cbranch_execz L_PFX')
        e('global_load_dword v79, v1, s[60:61]')
        e('L_PFX:')
        e('s_mov_b64 exec, s[62:63]')
        e('L_NOPF:')
        e('s_and_b32 s39, s32, 3')
        e('s_lshr_b32 s38, s32, 2')
        e('s_lshl_b32 s37, s31, 2')
        e('s_add_u32 s37, s37, s39')
        e('s_and_b32 s60, s31, 4')
        e('s_and_b32 s61, s31, 3')
        e('s_add_u32 s34, s60, s39')
        e('s_mul_i32 s35, s61, 7')
        e('s_add_u32 s35, s35, s38')
        e('s_lshl_b32 s36, s61, 1')
        e('s_add_u32 s36, s36, s60')
        s0m = self.o('s0m', 0)
        e('s_mov_b32 s33, s39')
        if s0m == 1:
            e('s_lshl_b32 s61, s39, 1\ns_add_u32 s36, s36, s61\ns_add_u32 s36, s36, s38\ns_lshr_b32 s33, s31, 2')
        elif s0m == 2:
            e('s_add_u32 s36, s36, s38')
        elif s0m == 3:
            e('s_lshl_b32 s61, s39, 1\ns_add_u32 s36, s36, s61\ns_lshr_b32 s33, s31, 2')
        elif s0m == 4:
            e('s_xor_b32 s61, s39, s38\ns_and_b32 s61, s61, 1\ns_lshl_b32 s61, s61, 2\ns_add_u32 s36, s36, s61')
            e('s_lshr_b32 s33, s39, 1\ns_lshr_b32 s61, s31, 2\ns_lshl_b32 s61, s61, 1\ns_add_u32 s33, s33, s61')
        loc = self.o('loc', 0)
        if loc:
            e('s_mov_b32 s34, s31\ns_mov_b32 s35, s32')
            m = self.o('s0x', 2)
            e(f's_mul_i32 s36, s31, {m}')
            e({1: 's_mov_b32 s33, 0', 2: 's_lshr_b32 s33, s31, 2', 4: 's_lshr_b32 s33, s31, 1'}[m])
        e('s_and_b32 s36, s36, 7')
        e('s_mov_b32 s3, s37')
        mp = 0 if loc else self.o('map', 2)
        if mp == 3:
            e('s_lshr_b32 s37, s31, 1\ns_lshl_b32 s37, s37, 3\ns_lshr_b32 s60, s32, 2\ns_add_u32 s37, s37, s60')
            e('s_and_b32 s60, s31, 1\ns_lshl_b32 s38, s39, 1\ns_add_u32 s38, s38, s60')
        elif mp:
            e('s_lshr_b32 s37, s31, 1\ns_lshl_b32 s37, s37, 3\ns_and_b32 s60, s32, 7\ns_add_u32 s37, s37, s60')
            e('s_and_b32 s60, s31, 1\ns_lshr_b32 s38, s32, 3')
            if mp == 1: e('s_lshl_b32 s60, s60, 2\ns_add_u32 s38, s38, s60')
            else: e('s_lshl_b32 s38, s38, 1\ns_add_u32 s38, s38, s60')
        e('s_sub_u32 s77, s30, 4')
        if 'wdtest' in self.opt:
            e('s_cmp_lt_u32 s30, 4\ns_cbranch_scc1 L_END')
            self.kwait()
            self.wd_setup()
            for rep in range(3):
                self.stamp(1 + 2 * rep)
                vm = VM(); wtok = {}
                for i in range(4): wtok[i] = self.wd_dma(vm, i)
                self.wd_tail(vm, wtok)
                e('s_waitcnt vmcnt(0) lgkmcnt(0)')
                self.stamp(2 + 2 * rep)
            self.dump_stamps()
            e('s_endpgm')
        e('s_cmp_ge_u32 s32, 28')
        e('s_cbranch_scc1 L_SPARE')
        e('s_cmp_lt_u32 s30, 4')
        e('s_cbranch_scc1 L_MFMA')

    def w_tr_addr(self, dst):
        e = self.e
        e('v_lshrrev_b32 v2, 5, v0')
        e('v_bfe_u32 v3, v0, 2, 2')
        e('v_bfe_u32 v4, v0, 1, 1')
        e('v_and_b32 v5, 1, v0')
        e('v_bfe_u32 v6, v0, 4, 1')
        e('v_and_b32 v7, 2, v3')
        e('v_lshl_add_u32 v7, v4, 2, v7')
        e('v_xor_b32 v7, v7, v5')
        e('v_lshlrev_b32 v7, 4, v7')
        e('v_lshl_add_u32 v7, v6, 3, v7')
        e('v_lshl_add_u32 v3, v2, 3, v3')
        e('v_lshl_add_u32 v7, v3, 7, v7')
        e(f'v_lshl_add_u32 v{dst}, v4, 13, v7')

    def g1_mfma(self):
        e = self.e
        ACC = 128; FR = 80
        XA = [16, 24]; WA = [20, 28]
        e('L_MFMA:')
        e('v_and_b32 v1, 31, v0')
        e('v_lshrrev_b32 v2, 5, v0')
        e('v_bfe_u32 v3, v1, 1, 3')
        e('v_xor_b32 v3, v3, v2')
        e('v_lshlrev_b32 v3, 4, v3')
        e('v_lshl_add_u32 v3, v1, 7, v3')
        e('s_lshl_b32 s60, s30, 13')
        e('s_add_u32 s60, s60, 16384')
        e('v_add_u32 v16, s60, v3')
        for ks in range(1, 4): e(f'v_xor_b32 v{16+ks}, {ks*32}, v16')
        self.w_tr_addr(20)
        e(f'v_add_u32 v20, {16384+32768}, v20')
        for j in range(1, 4): e(f'v_xor_b32 v{20+j}, {j*32}, v20')
        for i in range(8): e(f'v_add_u32 v{24+i}, {114688-16384}, v{16+i}')
        EX = 48
        for i in range(24):
            if i % 4: e(f'v_mov_b32 v{EX+i}, 0')
        e('v_lshlrev_b32 v8, 4, v0')
        e('v_lshlrev_b32 v9, 2, v0')
        e('v_lshlrev_b32 v10, 2, v1')
        e('s_lshl_b32 s60, s30, 8')
        e('v_add_u32 v10, s60, v10')
        e('v_mov_b32 v11, 0')
        self.conv_pre()
        self.kwait()
        e('s_cmp_lg_u32 s2, 0\ns_cbranch_scc1 L_NOPROD\ns_cmp_lg_u32 s30, 1\ns_cbranch_scc1 L_NOPROD')
        e('buffer_load_dword v2, v11, s[40:43], 0 offen sc1')
        self.srd(56, 26, 256)
        e('s_waitcnt vmcnt(0)')
        e('v_add_u32 v2, 1, v2\nv_mov_b32 v3, 1')
        e('s_mov_b64 exec, 1')
        e('buffer_store_dwordx2 v[2:3], v11, s[56:59], 0 offen sc1')
        e('buffer_store_dword v2, v11, s[40:43], 0 offen sc1')
        e('s_mov_b64 exec, -1')
        e('L_NOPROD:')

        def frag(st, which):
            return FR + st * 24 + which * 4
        def reads(ls, ks, st):
            base = SLOT[ls % 3]
            s = 1 if base == 114688 else 0
            off = base - (114688 if s else 16384)
            def X(tt):
                d = frag(st, tt)
                return [f'ds_read_b128 v[{d}:{d+3}], v{XA[s]+ks} offset:{off + tt*4096}']
            def W(j):
                d = frag(st, 2 + j)
                return [f'ds_read_b64_tr_b16 v[{d+2*t}:{d+2*t+1}], v{WA[s]+j} offset:{off + (16*ks+4*t)*128}' for t in range(2)]
            return X(0) + W(0) + W(1) + X(1) + W(2) + W(3)
        extra = [f'ds_read_b32 v32, v10 offset:{L_ST}', f'ds_read_b32 v33, v10 offset:{L_ST+128}'] + \
                [f'ds_read_b32 v{EX+8+4*j}, v9 offset:{L_CS + j*256}' for j in range(4)] + [f'ds_read_b32 v34, v11 offset:{L_NONCE}']
        order = [(0, 0), (0, 1), (1, 0), (1, 1), (0, 2), (1, 2), (0, 3), (1, 3)]
        needn = [3, 5, 6, 6, 8, 8, 10, 10]
        def mfma(A, B, tt, j, first=False):
            a = ACC + (tt * 4 + j) * 16
            c = '0' if first else f'v[{a}:{a+15}]'
            return f'v_mfma_f32_32x32x16_bf16 v[{a}:{a+15}], v[{A}:{A+3}], v[{B}:{B+3}], {c}'
        self.stamp(1)
        e('s_barrier')
        self.stamp(2)
        for r in reads(0, 0, 0): e(r)
        steps = [(ls, ks) for ls in range(8) for ks in range(4)]
        for si, (ls, ks) in enumerate(steps):
            st = si & 1
            if si + 1 < len(steps):
                nls, nks = steps[si + 1]
                nxt = reads(nls, nks, st ^ 1)
            else:
                nxt = extra
            boundary = (ks == 3)
            issued = 0
            done_cur = 0
            plan = [0, 0, 2, 2, 2, 2, 2, 0] if boundary else [2, 2, 2, 2, 1, 1, 0, 0]
            for mi, (tt, j) in enumerate(order):
                if needn[mi] > done_cur:
                    e(f's_waitcnt lgkmcnt({10 - needn[mi] + issued})')
                    done_cur = needn[mi]
                e(mfma(frag(st, 2 + j), frag(st, tt), tt, j, first=(si == 0)))
                if boundary and mi == 1:
                    if ls >= 6: e(f'ds_read_b32 v35, v11 offset:{L_CNT + 4*(3 if ls == 6 else 7)}')
                    e('s_waitcnt lgkmcnt(0)')
                    done_cur = 10
                    if 'g1st' in self.opt: self.stamp([4,5,6,7,8,9,10,11][ls])
                    if ls < 6: e('s_barrier')
                    else:
                        self.lds_signal(4 if ls == 6 else 5, 11, 34)
                        Lok = e.newlabel('OK')
                        e('v_readfirstlane_b32 s60, v35')
                        e('s_cmp_ge_u32 s60, 4')
                        e(f's_cbranch_scc1 {Lok}')
                        self.lds_wait(3 if ls == 6 else 7, 4, 11, 35)
                        e(f'{Lok}:')
                        issued_extra = 1
                for _ in range(plan[mi]):
                    if issued < len(nxt):
                        e(nxt[issued]); issued += 1
            assert issued == len(nxt)
        e('s_waitcnt lgkmcnt(0)')
        for tt in range(2):
            e(f'v_and_b32 v35, 0xffff, v{32+tt}')
            e('v_xor_b32 v35, 0x8000, v35')
            e(f'v_lshl_or_b32 v{EX+4*tt}, v35, 16, v35')
            e(f'v_and_b32 v{32+tt}, 0xffff0000, v{32+tt}')
        e('v_readfirstlane_b32 s70, v34')
        for (tt, j) in [(0, 0), (1, 0), (0, 1), (1, 1), (0, 2), (1, 2), (0, 3), (1, 3)]:
            e(mfma(EX + 8 + 4 * j, EX + 4 * tt, tt, j))
        self.stamp(3)
        if 'g1st' in self.opt: self.nostamp = True
        e(f's_xor_b32 s71, s70, {TAGX}')
        for tt in range(2):
            b = 36 + 6 * tt
            e(f'v_rcp_f32 v35, v{32+tt}')
            e(f'v_mul_f32 v{b+4}, v{32+tt}, v{32+tt}')
            e(f'v_mul_f32 v{b}, {f2u(K1C):#x}, v35')
            e(f'v_mul_f32 v{b+2}, v35, v35')
            e(f'v_mul_f32 v{b+2}, v{b+2}, v35')
            e(f'v_mul_f32 v{b+2}, {f2u(K2C):#x}, v{b+2}')
            e(f'v_mov_b32 v{b+1}, v{b}')
            e(f'v_mov_b32 v{b+5}, v{b+4}')
            e(f'v_mov_b32 v{b+3}, v{b+2}')
        e('s_lshl_b32 s64, s34, 3\ns_lshl_b32 s61, s30, 1\ns_add_u32 s64, s64, s61')
        e('s_mul_i32 s64, s64, 28\ns_add_u32 s64, s64, s35\ns_lshl_b32 s64, s64, 10')
        e(f's_add_u32 s64, s64, {WS_HS}')
        e(f's_add_u32 s65, s64, {28*1024}')
        e('s_lshl_b32 s76, s34, 2\ns_add_u32 s76, s76, s30\ns_lshl_b32 s76, s76, 5\ns_mul_i32 s61, s35, 37\ns_lshr_b32 s61, s61, 8\ns_add_u32 s76, s76, s61')
        e(f's_add_u32 s76, s76, s35\ns_lshl_b32 s76, s76, 7\ns_add_u32 s76, s76, {WS_FH}')
        blocks = [(tt, j) for j in range(4) for tt in range(2)]
        vm = VM(); tokS = {}
        hf = {0: 'sc1', 1: '', 2: 'nt', 3: 'sc0 sc1', 4: 'sc1 nt'}[self.o('hf', 0)]
        for bi, (tt, j) in enumerate(blocks):
            b = 36 + 6 * tt
            a = ACC + (tt * 4 + j) * 16
            T = 80 + (bi & 1) * 12
            P = [0, 2, 8, 10]
            for i, p in enumerate(P): e(f'v_pk_mul_f32 {pr(T+2*i)}, {pr(a+p)}, {pr(a+p)}')
            for i, p in enumerate(P): e(f'v_pk_fma_f32 {pr(T+2*i)}, {pr(T+2*i)}, {pr(b+2)}, {pr(b)}')
            for i, p in enumerate(P): e(f'v_pk_mul_f32 {pr(T+2*i)}, {pr(T+2*i)}, {pr(a+p)}')
            for i in range(8): e(f'v_exp_f32 v{T+i}, v{T+i}')
            for i, p in enumerate(P): e(f'v_pk_mul_f32 {pr(a+p)}, {pr(a+p)}, {pr(a+p+4)}')
            for i, p in enumerate(P): e(f'v_pk_fma_f32 {pr(T+2*i)}, {pr(T+2*i)}, {pr(b+4)}, {pr(b+4)}')
            for i in range(8): e(f'v_rcp_f32 v{T+i}, v{T+i}')
            for i, p in enumerate(P): e(f'v_pk_mul_f32 {pr(a+p)}, {pr(a+p)}, {pr(T+2*i)}')
            for i, p in enumerate(P): e(f'v_cvt_pk_bf16_f32 v{T+8+i}, v{a+p}, v{a+p+1}')
            if 'nohst' not in self.opt:
                e(f'buffer_store_dwordx4 v[{T+8}:{T+11}], v8, s[40:43], s{64+tt} offen {hf}'); tokS[bi] = vm.issue()
                if j < 3: e(f's_add_u32 s{64+tt}, s{64+tt}, {HJ}')
            if bi == self.o('faat', 6):
                vm.wait(e, tokS[3])
                self.store_flag('s76', 4, '' if self.o('ff', 0) else 'sc1'); vm.issue()
                self.stamp(1)
                e(f's_add_u32 s76, s76, {WS_FH2 - WS_FH}')
            if bi == self.o('cvat', 0):
                self.lds_wait(5, 4, 11, 35)
                self.conv_loads_h()
                tokC = vm.issue(10)
            if bi == self.o('ptat', 5):
                vm.wait(e, tokC)
                self.conv_patch()
            if bi == 6: e(f'ds_read_b32 v35, v11 offset:{L_CNT}')
        self.lds_signal(10, 11, 34)
        e('s_waitcnt lgkmcnt(1)')
        self.stamp(4)
        e('s_branch L_CONV')
        e('L_KVPOLL:')
        self.poll64(74, 's75', 72, sleep=16)
        self.conv_loads_kv()
        self.conv_pre()
        e('s_waitcnt vmcnt(0)')
        self.lds_signal(0, 12, 35)
        self.conv_patch()
        e('v_mov_b32 v35, 0')

    def kvflag_addr(self):
        e = self.e
        e('v_and_b32 v74, 15, v0\nv_lshlrev_b32 v74, 7, v74')
        e(f's_lshr_b32 s75, s2, 5\ns_lshl_b32 s75, s75, 12\ns_and_b32 s60, s30, 1\ns_lshl_b32 s60, s60, 11\ns_sub_u32 s75, s75, s60\ns_add_u32 s75, s75, {WS_FKV + 2048}')
        if self.o('kvrep', 8) == 8: e('s_lshl_b32 s60, s31, 15\ns_add_u32 s75, s75, s60')

    def conv_loads_h(self):
        e = self.e
        self.srd(48, 12, 2097152)
        self.srd(52, 14, 1024)
        e('s_lshr_b32 s62, s30, 1')
        e('s_and_b32 s63, s30, 1')
        e('s_lshl_b32 s78, s2, 1\ns_add_u32 s78, s78, s62')
        e(f's_mul_i32 s74, s62, {CH_SZ}\ns_add_u32 s74, s74, {IMG}')
        e('s_lshl_b32 s67, s78, 12\ns_lshl_b32 s61, s63, 1\ns_add_u32 s60, s67, s61')
        e(f's_mul_i32 s73, s63, {HO_OFF}\ns_add_u32 s73, s73, s74')
        e('s_add_u32 m0, s73, 32')
        for i in range(4):
            e(f'buffer_load_dwordx4 v8, s[48:51], s60 offen offset:{i*1024} lds')
        e('v_mov_b32 v12, 0')
        e('buffer_load_ushort v13, v12, s[48:51], s67 offen')
        e('s_lshl_b32 s67, s78, 1')
        e('buffer_load_ushort v14, v12, s[52:55], s67 offen')
        e('v_lshrrev_b32 v116, 3, v0')
        e('s_lshl_b32 s60, s30, 3')
        e('v_add_u32 v116, s60, v116')
        e('v_and_b32 v117, 7, v0')
        e('v_lshlrev_b32 v118, 10, v116')
        e('v_lshl_add_u32 v118, v117, 4, v118')
        e('s_lshl_b32 s68, s37, 16\ns_lshl_b32 s60, s38, 7\ns_add_u32 s68, s68, s60')
        e('s_add_u32 s69, s68, 32768')
        e('buffer_load_dwordx4 v[104:107], v118, s[44:47], s68 offen')
        e('buffer_load_dwordx4 v[108:111], v118, s[44:47], s69 offen')
        e('v_lshlrev_b32 v119, 3, v116')
        e(f's_lshl_b32 s79, s37, 9\ns_add_u32 s79, s79, {WS_STATS}')
        e('buffer_load_dwordx2 v[112:113], v119, s[40:43], s79 offen sc1')
        e('buffer_load_dwordx2 v[114:115], v119, s[40:43], s79 offen offset:256 sc1')

    def conv_loads_kv(self):
        e = self.e
        e('s_and_b32 s63, s30, 1')
        e(f's_lshl_b32 s60, s78, 12\ns_lshl_b32 s67, s63, 11\ns_add_u32 s60, s60, s67\ns_add_u32 s60, s60, {WS_KVT}')
        e(f's_add_u32 s67, s67, s74')
        e(f's_add_u32 m0, s67, {KV_OFF}')
        for i in range(2):
            e(f'buffer_load_dwordx4 v8, s[40:43], s60 offen offset:{i*1024} sc1 lds')

    def conv_pre(self):
        e = self.e
        e('v_and_b32 v1, 15, v0')
        e('v_lshrrev_b32 v2, 4, v0')
        e('v_add_u32 v3, 1, v1')
        e('v_lshrrev_b32 v3, 1, v3')
        e('v_lshl_add_u32 v3, v2, 2, v3')
        e('v_lshlrev_b32 v3, 2, v3')
        e('v_and_b32 v4, 1, v1')
        e('v_xor_b32 v4, 1, v4')
        e(f'v_mul_u32_u24 v4, {HO_OFF}, v4')
        e('v_add_u32 v3, v3, v4')
        e(f's_lshr_b32 s61, s30, 1\ns_mul_i32 s61, s61, {CH_SZ}\ns_and_b32 s60, s30, 1\ns_lshl_b32 s60, s60, 8\ns_add_u32 s60, s60, s61\ns_add_u32 s60, s60, {IMG}')
        e('v_add_u32 v72, s60, v3')
        e('v_lshlrev_b32 v3, 5, v1')
        e('v_lshlrev_b32 v4, 4, v2')
        e('v_sub_u32 v3, v4, v3')
        e(f's_add_u32 s60, s60, {KV_OFF+480}')
        e('v_add_u32 v73, s60, v3')
        e('v_lshlrev_b32 v3, 3, v2')
        e('v_add_u32 v3, v3, v1')
        e('v_sub_u32 v75, 15, v3')

    def conv_patch(self):
        e = self.e
        e('s_and_b32 s63, s30, 1')
        e('v_lshlrev_b32 v15, 16, v13')
        e('v_cmp_eq_u32 vcc, 7, v0')
        e('s_cmp_eq_u32 s63, 1')
        e('s_cselect_b64 vcc, vcc, 0')
        e('v_lshlrev_b32 v16, 2, v0')
        e('v_cndmask_b32 v15, v12, v15, vcc')
        e('v_add_u32 v3, s73, v16')
        e('s_mov_b64 exec, 0xff')
        e('ds_write_b32 v3, v15')
        e('s_mov_b64 exec, -1')
        e('s_lshl_b32 s60, s63, 8')
        e(f's_add_u32 s60, s60, {KV_OFF+4096}')
        e('s_add_u32 s60, s60, s74')
        e('v_add_u32 v16, s60, v16')
        e('ds_write_b32 v16, v12')
        e('v_and_b32 v4, 1, v75')
        e('v_lshlrev_b32 v4, 4, v4')
        e('v_lshlrev_b32 v4, v4, v14')
        e('v_ashrrev_i32 v3, 1, v75')
        for d in range(4):
            e(f'v_cmp_eq_u32 vcc, {d}, v3')
            e(f'v_cndmask_b32 v{26+d}, v12, v4, vcc')
        self.lds_signal(0, 12, 16)

    def conv(self):
        e = self.e
        e('L_CONV:')
        e('; ---- conv ----')
        ACC = 32; AF = [128, 160]; BF = [192, 224]
        e('s_and_b32 s63, s30, 1')
        e('v_mov_b32 v20, v72')
        for i in range(1, 4): e(f'v_add_u32 v{20+i}, {i*1024}, v72')
        e('v_mov_b32 v24, v73')
        self.stamp(5)
        fp = self.o('fp', 0)
        def hflag():
            e('s_cmp_ge_u32 s32, 28\ns_cbranch_scc1 L_NOHF')
            e('s_waitcnt vmcnt(0)')
            self.store_flag('s76', 4, '' if self.o('ff', 0) else 'sc1')
            self.stamp(12)
            e('L_NOHF:')
        if fp < 0: hflag()
        e('v_readfirstlane_b32 s60, v35')
        e('s_cmp_ge_u32 s60, 8\ns_cbranch_scc1 L_CVGO')
        self.lds_wait(0, 8, 12, 16)
        e('L_CVGO:')
        self.stamp(6)
        def rd(p, st):
            out = []
            for a in range(8):
                d = AF[st] + 4 * a
                o = (a & 1) * 128 + p * 16
                out.append(f'ds_read2_b32 v[{d}:{d+1}], v{20 + (a >> 1)} offset0:{o} offset1:{o+1}')
                out.append(f'ds_read2_b32 v[{d+2}:{d+3}], v{20 + (a >> 1)} offset0:{o+2} offset1:{o+3}')
                d = BF[st] + 4 * a
                out.append(f'ds_read_b128 v[{d}:{d+3}], v24 offset:{(7-a)*512 + p*64}')
            return out
        for r in rd(0, 0): e(r)
        for p in range(4):
            st = p & 1
            nxt = rd(p + 1, st ^ 1) if p < 3 else []
            e('s_waitcnt lgkmcnt(0)')
            k = 0; nm = 0
            for a in range(8):
                for b in range(8 - a):
                    g = a + b
                    c = '0' if (p == 0 and a == 0) else f'v[{ACC+4*g}:{ACC+4*g+3}]'
                    e(f'v_mfma_f32_16x16x32_bf16 v[{ACC+4*g}:{ACC+4*g+3}], v[{AF[st]+4*a}:{AF[st]+4*a+3}], v[{BF[st]+4*b}:{BF[st]+4*b+3}], {c}')
                    if k < len(nxt):
                        e(nxt[k]); k += 1
                    nm += 1
                    if p == fp and nm == self.o('fpm', 24): hflag()
            if p == 0:
                e('s_cmp_lg_u32 s63, 0')
                e('s_cbranch_scc1 L_NOD')
                for b in range(8):
                    e(f'v_mfma_f32_16x16x32_bf16 v[{ACC+4*b}:{ACC+4*b+3}], v[26:29], v[{BF[st]+4*b}:{BF[st]+4*b+3}], v[{ACC+4*b}:{ACC+4*b+3}]')
                e('L_NOD:')
        self.stamp(7)
        e('v_and_b32 v1, 15, v0')
        e('v_lshrrev_b32 v2, 4, v0')
        e('v_lshlrev_b32 v8, 4, v0')
        e('s_lshl_b32 s60, s30, 13')
        e('v_add_u32 v9, s60, v8')
        for g in range(8):
            e(f'ds_write_b128 v9, v[{ACC+4*g}:{ACC+4*g+3}] offset:{XB + g*1024}')
        e('s_waitcnt lgkmcnt(0)')
        self.lds_signal(1, 12, 10)
        e('v_lshrrev_b32 v3, 2, v1')
        e('v_lshlrev_b32 v3, 16, v3')
        e('v_and_b32 v4, 3, v1')
        e('v_lshl_add_u32 v3, v4, 6, v3')
        e('v_lshl_add_u32 v3, v2, 4, v3')
        e(f's_lshl_b32 s64, s30, 19\ns_lshl_b32 s61, s2, 8\ns_add_u32 s64, s64, s61\ns_add_u32 s64, s64, {WS_YS}')
        e('s_add_u32 s65, s64, 0x40000')
        e('s_lshl_b32 s60, s30, 11')
        e('v_add_u32 v9, s60, v8')
        self.lds_wait(1, 4, 12, 10)
        for gg in range(2):
            for src in range(4):
                d = 128 + (gg * 4 + src) * 4
                e(f'ds_read_b128 v[{d}:{d+3}], v9 offset:{XB + src*8192 + gg*1024}')
        for gg in range(2):
            e(f's_waitcnt lgkmcnt({4 - 4*gg})')
            d = 128 + gg * 16
            for r in range(0, 4, 2):
                e(f'v_pk_add_f32 {pr(d+r)}, {pr(d+r)}, {pr(d+4+r)}')
                e(f'v_pk_add_f32 {pr(d+8+r)}, {pr(d+8+r)}, {pr(d+12+r)}')
            for r in range(4):
                e(f'v_cvt_pk_bf16_f32 v{64+4*gg+r}, v{d+r}, v{d+8+r}')
            e(f'buffer_store_dwordx4 v[{64+4*gg}:{67+4*gg}], v3, s[40:43], s{64+gg} offen sc1')
        L = e.newlabel('ST'); D = e.newlabel('STD')
        e(f's_mov_b32 s72, {POLL_LIMIT}')
        e(f'{L}:')
        e('v_cmp_ne_u32 vcc, s70, v113')
        e('v_cmp_ne_u32 s[64:65], s70, v115')
        e('s_or_b64 vcc, vcc, s[64:65]')
        e(f's_cbranch_scc0 {D}')
        e('s_sleep 4')
        e('buffer_load_dwordx2 v[112:113], v119, s[40:43], s79 offen sc1')
        e('buffer_load_dwordx2 v[114:115], v119, s[40:43], s79 offen offset:256 sc1')
        e('s_waitcnt vmcnt(0)')
        e('s_sub_u32 s72, s72, 1\ns_cmp_lg_u32 s72, 0')
        e(f's_cbranch_scc1 {L}')
        e(f'{D}:')
        for ee in range(2):
            sreg = 112 + 2 * ee
            e(f'v_lshlrev_b32 v30, 16, v{sreg}')
            e(f'v_and_b32 v31, 0xffff0000, v{sreg}')
            e('v_rcp_f32 v31, v31')
            for q in range(4):
                x = 104 + ee * 4 + q
                d = 32 + ee * 16 + 2 * q
                e(f'v_lshlrev_b32 v{d}, 16, v{x}')
                e(f'v_and_b32 v{d+1}, 0xffff0000, v{x}')
                e(f'v_sub_f32 v{d+8}, v{d}, v30')
                e(f'v_sub_f32 v{d+9}, v{d+1}, v30')
                e(f'v_mul_f32 v{d+8}, v{d+8}, v31')
                e(f'v_mul_f32 v{d+9}, v{d+9}, v31')
        e(f's_lshl_b32 s60, s30, 15\ns_lshl_b32 s61, s2, 7\ns_add_u32 s60, s60, s61\ns_add_u32 s60, s60, {WS_FY}')
        e('s_waitcnt vmcnt(0)')
        self.store_flag('s60', 4)
        self.stamp(8)
        e('v_lshrrev_b32 v20, 4, v0\nv_lshlrev_b32 v20, 8, v20\nv_and_b32 v21, 15, v0')
        e('s_lshl_b32 s60, s30, 1')
        e('v_xor_b32 v21, s60, v21\nv_lshl_add_u32 v20, v21, 4, v20\nv_xor_b32 v21, 16, v20')
        e(f's_lshl_b32 s62, s37, 16\ns_lshl_b32 s61, s38, 13\ns_add_u32 s62, s62, s61\ns_lshl_b32 s61, s30, 11\ns_add_u32 s62, s62, s61\ns_add_u32 s62, s62, {WS_YS}')
        e(f's_add_u32 s63, s61, {IMG}')
        e('v_lshrrev_b32 v22, 2, v116\nv_xor_b32 v22, v22, v117\nv_lshlrev_b32 v22, 4, v22\nv_lshl_add_u32 v22, v117, 10, v22')
        e(f'v_and_b32 v23, 3, v116\nv_lshl_add_u32 v22, v23, 2, v22\nv_add_u32 v22, {IMG}, v22')
        e('v_and_b32 v4, 7, v0\nv_lshlrev_b32 v4, 7, v4')
        e(f's_lshr_b32 s66, s37, 3\ns_lshl_b32 s66, s66, 15\ns_lshl_b32 s61, s38, 12\ns_add_u32 s66, s66, s61\ns_lshl_b32 s61, s30, 10\ns_add_u32 s66, s66, s61\ns_add_u32 s66, s66, {WS_FY}')
        self.lds_wait(2, self.o('ysign', 2), 12, 10, sleep=2)
        self.poll64(4, 's66', 6, sleep=self.o('ysleep', 6))
        self.stamp(9)
        e('s_mov_b32 m0, s63')
        e('buffer_load_dwordx4 v20, s[40:43], s62 offen sc1 lds')
        e('buffer_load_dwordx4 v21, s[40:43], s62 offen offset:1024 sc1 lds')
        e('s_waitcnt vmcnt(0)')
        self.lds_signal(9, 12, 10)
        self.lds_wait(9, 4, 12, 10)
        for ee in range(2):
            for q in range(4):
                e(f'ds_read_b32 v{80+ee*4+q}, v22 offset:{q*256+ee*128}')
        for ee in range(2):
            for q in range(4):
                y = 80 + ee * 4 + q
                d = 32 + ee * 16 + 2 * q
                e(f's_waitcnt lgkmcnt({7 - ee*4 - q})')
                e(f'v_lshlrev_b32 v30, 16, v{y}')
                e(f'v_and_b32 v31, 0xffff0000, v{y}')
                e(f'v_fmac_f32 v{d}, v{d+8}, v30')
                e(f'v_fmac_f32 v{d+1}, v{d+9}, v31')
        e('v_and_b32 v4, 7, v116')
        e('v_lshlrev_b32 v5, 1, v117')
        e('v_xor_b32 v4, v4, v5')
        e('v_lshlrev_b32 v4, 4, v4')
        e('v_lshl_add_u32 v4, v116, 8, v4')
        e(f'v_add_u32 v4, {65536}, v4')
        e('v_xor_b32 v5, 16, v4')
        e('v_add_u32 v6, 49152, v4')
        e('v_add_u32 v7, 49152, v5')
        self.srd(48, 24, 2097152)
        self.stamp(10)
        e('s_barrier')
        self.stamp(11)
        for ee in range(2):
            for kq in range(4):
                for h in range(2):
                    d = 128 + ((ee * 4 + kq) * 2 + h) * 4
                    e(f'ds_read_b128 v[{d}:{d+3}], v{4+h+2*ee} offset:{kq*12288}')
        for ee in range(2):
            e(f's_waitcnt lgkmcnt({8 - 8*ee})')
            dd = 32 + ee * 16
            for kq in range(4):
                d = 128 + (ee * 4 + kq) * 8
                for i in range(0, 8, 2):
                    e(f'v_pk_add_f32 v[{dd+i}:{dd+i+1}], v[{dd+i}:{dd+i+1}], v[{d+i}:{d+i+1}]')
            for q in range(4):
                e(f'v_cvt_pk_bf16_f32 v{dd+8+q}, v{dd+2*q}, v{dd+2*q+1}')
            of = {0:'',1:'sc1',2:'nt',3:'sc0 sc1',4:'sc0 sc1 nt'}[self.o('of',0)]
            e(f'buffer_store_dwordx4 v[{dd+8}:{dd+11}], v118, s[48:51], s{68+ee} offen {of}')
        e('s_or_b32 s60, s2, s30\ns_cmp_lg_u32 s60, 0\ns_cbranch_scc1 L_NORST')
        self.srd(56, 26, 256)
        e('v_mov_b32 v2, 0\nv_mov_b32 v3, 0')
        e('s_mov_b64 exec, 1')
        e('buffer_store_dwordx2 v[2:3], v2, s[56:59], 0 offen sc1')
        e('s_mov_b64 exec, -1')
        if self.o('padto',0):
            e('L_PADL:')
            e('s_memrealtime s[98:99]\ns_waitcnt lgkmcnt(0)\ns_sub_u32 s98, s98, s96')
            e(f's_cmp_lt_u32 s98, {self.o("padto",0)}\ns_cbranch_scc1 L_PADL')
        e('L_NORST:')
        if self.o('xccpad',0):
            e('s_getreg_b32 s60, hwreg(HW_REG_XCC_ID, 0, 4)')
            e('s_cmp_eq_u32 s60, s31\ns_cbranch_scc1 L_XOK')
            e('L_PADX:')
            e('s_memrealtime s[98:99]\ns_waitcnt lgkmcnt(0)\ns_sub_u32 s98, s98, s96')
            e(f's_cmp_lt_u32 s98, {self.o("xccpad",0)}\ns_cbranch_scc1 L_PADX')
            e('L_XOK:')
        self.dump_stamps()
        e('s_endpgm')

    def wd_setup(self):
        e = self.e
        self.srd(52, 22, 1835008)
        e('v_lshrrev_b32 v1, 3, v0')
        e('v_bfe_u32 v2, v0, 4, 1')
        e('v_lshlrev_b32 v2, 2, v2')
        e('v_and_b32 v3, 7, v0')
        e('v_xor_b32 v2, v2, v3')
        e('v_lshlrev_b32 v2, 4, v2')
        e('v_lshl_add_u32 v10, v1, 10, v2')
        e('s_mul_i32 s78, s77, 458752\ns_lshl_b32 s60, s38, 7\ns_add_u32 s78, s78, s60')
        e('s_mul_i32 s79, s77, 12288')
        rot = self.o('rot', 5)
        if rot == 0: e('s_mov_b32 s74, 0')
        elif rot == 5: e('s_mul_i32 s74, s31, 7\ns_lshr_b32 s74, s74, 3')
        elif rot == 7: e('s_and_b32 s74, s32, 7\ns_mul_i32 s74, s74, 7\ns_lshr_b32 s74, s74, 3')
        elif rot == 8: e('s_lshr_b32 s74, s32, 3\ns_lshl_b32 s74, s74, 1')
        elif rot == 9: e('s_lshr_b32 s74, s32, 2\ns_cmp_eq_u32 s74, 7\ns_cselect_b32 s74, 3, s74')
        elif rot == 1: e('s_mul_i32 s74, s38, 7\ns_lshr_b32 s74, s74, 3')
        elif rot == 2: e('s_mul_i32 s74, s38, 7\ns_lshr_b32 s74, s74, 3\ns_lshl_b32 s60, s39, 1\ns_add_u32 s74, s74, s60\ns_sub_u32 s60, s74, 7\ns_cmp_ge_u32 s74, 7\ns_cselect_b32 s74, s60, s74')
        e('s_lshl_b32 s74, s74, 2')
        e('s_mov_b32 s73, s74')
        e('v_bfe_u32 v1, v0, 2, 2')
        e('v_lshrrev_b32 v2, 5, v0')
        e('v_lshl_add_u32 v2, v2, 3, v1')
        e('v_bfe_u32 v3, v0, 4, 1')
        e('v_bfe_u32 v4, v0, 1, 1')
        e('v_lshl_add_u32 v3, v3, 1, v4')
        e('v_lshrrev_b32 v1, 1, v1')
        e('v_lshlrev_b32 v1, 2, v1')
        e('v_xor_b32 v3, v3, v1')
        e('v_lshlrev_b32 v3, 4, v3')
        e('v_and_b32 v4, 1, v0')
        e('v_lshl_add_u32 v3, v4, 3, v3')
        e('v_lshl_add_u32 v3, v2, 7, v3')
        e(f's_add_u32 s60, s79, {65536}')
        e('v_add_u32 v11, s60, v3')
        e('v_xor_b32 v12, 64, v11')
        e(f's_lshl_b32 s76, s77, 11\ns_add_u32 s76, s76, {L_TRK}')
        e('v_add_u32 v64, s76, v3')
        e('v_xor_b32 v65, 64, v64')
        e('v_lshlrev_b32 v66, 7, v0')

    def ntr(self):
        return self.o('ntr', 0)

    def wslot(self, i):
        s = (i - self.ntr()) % 12
        return (114688 + s * 2048, 49152 + s * 2048) if s < 6 else (65536 + (s - 6) * 2048, (s - 6) * 2048)

    def wd_dma(self, vm, i, trickle=False):
        e = self.e
        if trickle: sb, base = 's76', 0
        else: sb, base = 's79', self.wslot(i)[0]
        st = self.ORDER[i]
        j = 2 * (st // 14) + (st & 1); cc = (st % 14) // 2
        if cc:
            e(f's_add_u32 s60, s74, {4*cc + j}\ns_sub_u32 s61, s60, 28\ns_cmp_ge_u32 s60, 28\ns_cselect_b32 s60, s61, s60')
        else:
            e(f's_add_u32 s60, s74, {j}')
        e('s_lshl_b32 s60, s60, 14\ns_add_u32 s60, s60, s78')
        e(f's_add_u32 m0, {sb}, {base}')
        e('s_add_u32 s61, s60, 8192')
        e('buffer_load_dwordx4 v10, s[52:55], s60 offen lds')
        e(f's_add_u32 m0, {sb}, {base + 1024}')
        e('buffer_load_dwordx4 v10, s[52:55], s61 offen lds')
        return vm.issue(2)

    ORDER = [0, 1, 14, 15] + list(range(2, 14)) + list(range(16, 28))

    def hflag_addr(self):
        e = self.e
        e('v_min_u32 v4, 6, v0\nv_lshlrev_b32 v4, 7, v4')
        e(f's_lshl_b32 s75, s37, 2\ns_add_u32 s75, s75, s77\ns_lshl_b32 s75, s75, 10\ns_add_u32 s75, s75, {WS_FH}')

    def wd_read(self, dst, i, trickle=False):
        if trickle: va, off = 64, 0
        else: va, off = 11, self.wslot(i)[1]
        return [f'ds_read_b64_tr_b16 v[{dst+4*ct+2*t}:{dst+4*ct+2*t+1}], v{va+ct} offset:{off + t*512}' for ct in range(2) for t in range(2)]

    def wd_pf(self, vm, q, wide=False):
        e = self.e
        sh = 1 if wide else 2
        e(f's_lshr_b32 s60, s32, {sh}\ns_add_u32 s60, s60, {q * (14 if wide else 7)}\ns_mul_i32 s61, s31, 7\ns_lshr_b32 s61, s61, 1\ns_add_u32 s60, s60, s61')
        e('s_sub_u32 s61, s60, 28\ns_cmp_ge_u32 s60, 28\ns_cselect_b32 s60, s61, s60')
        e(f's_lshl_b32 s60, s60, 14\ns_and_b32 s61, s32, {(1 << sh) - 1}\ns_lshl_b32 s61, s61, {14 - sh}\ns_add_u32 s60, s60, s61')
        e('s_mul_i32 s61, s77, 458752\ns_add_u32 s60, s60, s61')
        if not wide: e('s_mov_b32 exec_hi, 0')
        e('buffer_load_dword v67, v66, s[52:55], s60 offen')
        if not wide: e('s_mov_b64 exec, -1')
        return vm.issue()

    WD0 = 80
    def wd_tail(self, vm, tok, dyn=False, npf=4, moved=0, hooks=None):
        e = self.e
        Tbig = self.o('wdT', 6); Tsm = self.o('wdS', 2)
        a, b = self.ntr() + self.o('wdA', 12), self.ntr() + self.o('wdB', 17)
        n0 = len(tok)
        waited = moved - 1
        def move(upto):
            nonlocal moved, waited
            while moved < min(upto, 16):
                if moved > waited: vm.wait(e, tok[moved]); waited = moved
                for r in self.wd_read(self.WD0 + 8 * self.ORDER[moved], moved): e(r)
                moved += 1
                if moved % 3 == 0: e('s_waitcnt lgkmcnt(4)')
        for i in range(n0, 28):
            T = Tsm if (dyn and a <= i < b) else Tbig
            if hooks and i in hooks: hooks[i]()
            if dyn and i == b and self.o('wdW', 1):
                self.lds_wait(10, 4, 68, 69, sleep=1)
                while 0 < npf < 4:
                    self.wd_pf(vm, npf); npf += 1
            if i - T >= 0:
                move(i - T + 1)
                if i - T > waited: vm.wait(e, tok[i - T]); waited = i - T
            move(i - 12 + 1)
            if i >= 12: e('s_waitcnt lgkmcnt(0)')
            tok[i] = self.wd_dma(vm, i)
            if dyn and 'wdst' in self.opt and i in (6, 10, 14, 18, 22, 26): self.stamp({6: 1, 10: 2, 14: 3, 18: 4, 22: 9, 26: 6}[i])
        move(16)

    def g1_helper(self):
        e = self.e
        vm = VM()
        e('s_and_b32 s62, s77, 1')
        e('s_lshr_b32 s63, s77, 1')
        e('v_lshrrev_b32 v1, 3, v0')
        e('v_lshrrev_b32 v2, 4, v0')
        e('v_and_b32 v3, 7, v0')
        e('s_lshl_b32 s60, s62, 2')
        e('v_add_u32 v4, s60, v2')
        e('v_xor_b32 v4, v4, v3')
        e('v_lshlrev_b32 v4, 4, v4')
        e('v_lshl_add_u32 v13, v1, 10, v4')
        e('v_and_b32 v2, 1, v2')
        e('v_lshlrev_b32 v2, 1, v2')
        e('v_add_u32 v2, s60, v2')
        e('v_xor_b32 v2, v2, v3')
        e('v_lshlrev_b32 v2, 4, v2')
        e('v_mul_u32_u24 v1, 3584, v1')
        e('v_add_u32 v14, v1, v2')
        e('s_lshl_b32 s64, s34, 18\ns_lshl_b32 s60, s77, 13\ns_add_u32 s64, s64, s60')
        e('s_mul_i32 s65, s63, 28672\ns_lshl_b32 s60, s35, 7\ns_add_u32 s65, s65, s60')
        e('s_lshl_b32 s66, s77, 10')
        e('s_lshl_b32 s67, s62, 13\ns_lshl_b32 s60, s63, 10\ns_add_u32 s67, s67, s60\ns_add_u32 s67, s67, 32768')
        e('s_mov_b32 s50, 1835008\ns_mov_b32 s51, 0x20000')
        self.kwait()
        e('s_cmp_eq_u32 s62, 0')
        e('s_cselect_b32 s48, s18, s20\ns_cselect_b32 s49, s19, s21')
        def stage(ls):
            sl = SLOT[ls % 3]
            e(f's_add_u32 s60, s36, {ls}\ns_and_b32 s60, s60, 7')
            e('s_lshl_b32 s68, s60, 7\ns_add_u32 s68, s68, s64')
            e('s_mul_i32 s69, s60, 229376')
            e(f's_add_u32 m0, s67, {sl}')
            e('s_add_u32 s69, s69, s65')
            for j in range(4):
                e('buffer_load_dwordx4 v14, s[48:51], s69 offen ' + ('nt ' if 'wnt' in self.opt else '') + 'lds')
                e(f's_add_u32 m0, s66, {sl + 2*j*4096}')
                e('s_add_u32 s69, s69, 57344')
                e('buffer_load_dwordx4 v13, s[44:47], s68 offen lds')
                e(f's_add_u32 m0, s66, {sl + (2*j+1)*4096}')
                e('s_add_u32 s68, s68, 32768')
                e('buffer_load_dwordx4 v13, s[44:47], s68 offen lds')
                if j < 3:
                    e(f's_add_u32 m0, s67, {sl + (j+1)*2048}')
                    e('s_add_u32 s68, s68, 32768')
            return vm.issue(12)
        tok = {}
        tok[0] = stage(0)
        self.stamp(9)
        self.srd(56, 26, 256)
        self.w_tr_addr(15)
        e('s_lshl_b32 s60, s77, 5')
        e('v_xor_b32 v15, s60, v15')
        e('v_add_u32 v15, 32768, v15')
        for i in range(4): e(f'v_mov_b32 v{48+i}, 0x3f803f80')
        e('v_mov_b32 v68, 0\nv_lshlrev_b32 v1, 2, v0')
        e(f'ds_write_b32 v1, v68 offset:{L_CNT}')
        e('s_waitcnt lgkmcnt(0)')
        self.wd_setup()
        tok[1] = stage(1)
        wtok = {}
        npf = 0
        for ls in range(7):
            vm.wait(e, tok[ls])
            e('s_barrier')
            if ls in (0, 2, 4, 6): self.stamp(1 + ls // 2)
            if ls == 7: self.stamp(11)
            if ls == 8: self.stamp(12)
            if ls == 1:
                e('v_mov_b32 v9, 0')
                e('buffer_load_dwordx2 v[54:55], v9, s[56:59], 0 offen sc1'); vm.issue()
            if ls == self.o('stls', 1): self.stats_issue(208, 4); vm.issue(2)
            NT = self.ntr()
            it = ls - self.o('tr0', 6 - NT)
            if 1 <= it <= NT:
                vm.wait(e, wtok[it - 1])
                for r in self.wd_read(self.WD0 + 8 * self.ORDER[it - 1], it - 1, trickle=True): e(r)
                e('s_waitcnt lgkmcnt(0)')
            if 0 <= it < NT: wtok[it] = self.wd_dma(vm, it, trickle=True)
            gls = self.o('gls', 6)
            if ls == gls and gls < 6: self.gran_issue(); tokG = vm.issue(5)
            if 0 <= ls <= 5: tok[ls + 2] = stage(ls + 2)
            if ls == gls and gls == 6: self.gran_issue(); tokG = vm.issue(5)
            if ls < 4:
                L = e.newlabel('NOCS')
                e(f's_cmp_lg_u32 s33, {ls}\ns_cbranch_scc1 {L}')
                e(f'v_add_u32 v9, {SLOT[ls % 3]}, v15')
                for ks in range(4):
                    for t in range(2):
                        e(f'ds_read_b64_tr_b16 v[{32+4*ks+2*t}:{33+4*ks+2*t}], v9 offset:{(16*ks+4*t)*128}')
                e('s_waitcnt lgkmcnt(0)')
                e('v_mfma_f32_32x32x16_bf16 v[16:31], v[48:51], v[32:35], 0')
                for ks in range(1, 4):
                    e(f'v_mfma_f32_32x32x16_bf16 v[16:31], v[48:51], v[{32+4*ks}:{35+4*ks}], v[16:31]')
                e('v_mov_b32 v52, v16')
                e(f'{L}:')
            if ls == 3:
                e('v_readfirstlane_b32 s70, v54\nv_readfirstlane_b32 s71, v55')
                e('s_cmp_lg_u32 s71, 0\ns_cbranch_scc1 L_HAVEN')
                self.get_nonce_blocking(54)
                e('L_HAVEN:')
                e(f's_xor_b32 s71, s70, {TAGX}')
                e('s_add_u32 s60, s36, s33\ns_and_b32 s60, s60, 7\ns_lshl_b32 s61, s35, 3\ns_add_u32 s60, s60, s61')
                e(f's_lshl_b32 s60, s60, 10\ns_lshl_b32 s61, s77, 8\ns_add_u32 s60, s60, s61\ns_add_u32 s60, s60, {WS_CS}')
                e('v_mov_b32 v53, s70')
                e('v_lshlrev_b32 v9, 3, v0')
                e('s_mov_b32 exec_hi, 0')
                e('buffer_store_dwordx2 v[52:53], v9, s[40:43], s60 offen sc1'); vm.issue()
                e('s_mov_b64 exec, -1')
                self.stats_finish(208, 216, 48); vm.issue()
            for _ in range(int(str(self.o('pfsch', 10000000))[1 + ls])):
                self.wd_pf(vm, npf); npf += 1
            if ls == 5 and self.o('pfssm', 1):
                L = e.newlabel('NS')
                e(f's_cmp_lg_u32 s77, 0\ns_cbranch_scc1 {L}')
                self.srd(56, 12, 2097152)
                e('s_lshl_b32 s60, s2, 13')
                e('buffer_load_dword v67, v66, s[56:59], s60 offen')
                e(f'{L}:')
            if ls == 5: pass
        for i in range(NT, NT + self.o('w6', 4)): wtok[i] = self.wd_dma(vm, i)
        def st7():
            vm.wait(e, tok[7])
            self.lds_signal(3, 68, 69)
            self.stamp(11)
        if gls == 6: st7()
        vm.wait(e, tokG)
        self.gran_check_build()
        e('s_waitcnt lgkmcnt(0)')
        self.lds_signal(7, 68, 69)
        self.stamp(12)
        if gls < 6: st7()
        for i in range(len(wtok), NT + 6): wtok[i] = self.wd_dma(vm, i)
        self.lds_wait(4, 4, 68, 69, sleep=1)
        kt = {}
        def kv_a():
            self.kvflag_addr()
            e('buffer_load_dwordx2 v[72:73], v74, s[40:43], s75 offen sc1')
            kt['f'] = vm.issue()
            if 'kvst' in self.opt: self.stamp(1)
        def kv_b():
            e('v_lshlrev_b32 v75, 4, v0')
            vm.wait(e, kt['f'])
            if 'kvst' in self.opt: self.stamp(2); e(f's_mov_b32 s72, {POLL_LIMIT + 1}')
            e('v_cmp_ne_u64 vcc, s[70:71], v[72:73]')
            e('s_cbranch_vccz L_KVOK')
            self.poll64(74, 's75', 72, sleep=8)
            e('L_KVOK:')
            if 'kvst' in self.opt: self.stamp(3); e(f's_sub_u32 s84, {POLL_LIMIT + 1}, s72\ns_add_u32 s84, s84, s80')
            self.lds_wait(5, 4, 68, 69)
            e('s_lshr_b32 s62, s77, 1\ns_and_b32 s63, s77, 1\ns_lshl_b32 s63, s63, 11')
            e(f's_lshl_b32 s60, s2, 1\ns_add_u32 s60, s60, s62\ns_lshl_b32 s60, s60, 12\ns_add_u32 s60, s60, s63\ns_add_u32 s60, s60, {WS_KVT}')
            e(f's_mul_i32 s62, s62, {CH_SZ}\ns_add_u32 s62, s62, s63\ns_add_u32 m0, s62, {IMG + KV_OFF}')
            for i in range(2):
                e(f'buffer_load_dwordx4 v75, s[40:43], s60 offen offset:{i*1024} sc1 lds')
            kt['k'] = vm.issue(2)
            if 'wdst' not in self.opt: self.stamp(9)
        def kv_c():
            vm.wait(e, kt['k'])
            self.lds_signal(0, 68, 69)
            if 'wdst' not in self.opt: self.stamp(6)
        def pa():
            self.hflag_addr()
            e('buffer_load_dwordx2 v[6:7], v4, s[40:43], s75 offen sc1')
            kt['a'] = vm.issue()
        hooks = {self.o('kvA', 8): kv_a, self.o('kvB', 12): kv_b, self.o('kvC', 14): kv_c, self.o('paat', 24): pa}
        self.wd_tail(vm, wtok, dyn=True, npf=npf, moved=NT, hooks=hooks)
        vm.wait(e, kt['a'])

    def gran_issue(self):
        e = self.e
        e(f's_lshl_b32 s60, s34, 11\ns_lshl_b32 s61, s77, 9\ns_add_u32 s60, s60, s61\ns_add_u32 s60, s60, {WS_STATS}')
        e('v_lshlrev_b32 v9, 3, v0')
        e('buffer_load_dwordx2 v[16:17], v9, s[40:43], s60 offen sc1')
        e('v_and_b32 v8, 31, v0\nv_lshlrev_b32 v8, 3, v8\nv_lshrrev_b32 v7, 5, v0\nv_lshl_add_u32 v7, v7, 10, v8')
        e(f's_lshl_b32 s60, s35, 13\ns_lshl_b32 s61, s77, 8\ns_add_u32 s60, s60, s61\ns_add_u32 s60, s60, {WS_CS}')
        e('s_add_u32 s61, s60, 4096')
        e('buffer_load_dwordx2 v[18:19], v7, s[40:43], s60 offen sc1')
        e('buffer_load_dwordx2 v[20:21], v7, s[40:43], s60 offen offset:2048 sc1')
        e('buffer_load_dwordx2 v[22:23], v7, s[40:43], s61 offen sc1')
        e('buffer_load_dwordx2 v[24:25], v7, s[40:43], s61 offen offset:2048 sc1')

    def gran_check_build(self):
        e = self.e
        L = e.newlabel('GR'); D = e.newlabel('GRD')
        e(f's_mov_b32 s72, {POLL_LIMIT}')
        e(f'{L}:')
        e('v_cmp_ne_u32 vcc, s70, v17')
        for r in (19, 21, 23, 25):
            e(f'v_cmp_ne_u32 s[60:61], s70, v{r}')
            e('s_or_b64 vcc, vcc, s[60:61]')
        e(f's_cbranch_scc0 {D}')
        e('s_sleep 4')
        self.gran_issue()
        e('s_waitcnt vmcnt(0)')
        e('s_sub_u32 s72, s72, 1\ns_cmp_lg_u32 s72, 0')
        e(f's_cbranch_scc1 {L}')
        e(f'{D}:')
        e('v_add_f32 v18, v18, v20\nv_add_f32 v22, v22, v24\nv_add_f32 v18, v18, v22')
        e('v_mov_b32 v19, v18')
        e('v_permlane32_swap_b32 v18, v19')
        e('v_add_f32 v18, v18, v19')
        e('v_cvt_pk_bf16_f32 v19, v18, v18')
        e('v_lshlrev_b32 v20, 16, v19')
        e('v_sub_f32 v20, v18, v20')
        e('v_cvt_pk_bf16_f32 v28, v18, v20')
        e('v_mov_b32 v29, 0')
        e('v_cmp_gt_u32 vcc, 32, v0')
        e('v_cndmask_b32 v28, v29, v28, vcc')
        e('v_lshlrev_b32 v8, 2, v0\ns_lshl_b32 s60, s77, 8\nv_add_u32 v8, s60, v8')
        e(f'ds_write_b32 v8, v28 offset:{L_CS}')
        e(f'ds_write_b32 v8, v16 offset:{L_ST}')
        e('v_mov_b32 v20, s70')
        e(f'ds_write_b32 v29, v20 offset:{L_NONCE}')

    def g2(self):
        e = self.e
        e('L_G2:')
        e('; ---- GEMM2 ----')
        ACC = 16; W = self.WD0
        self.stamp(5)
        e('v_mov_b32 v3, 0')
        e(f's_mul_i32 s62, s37, 56\ns_mul_i32 s63, s77, 7\ns_add_u32 s62, s62, s63\ns_lshl_b32 s62, s62, 10\ns_add_u32 s62, s62, {WS_HS}')
        e('v_lshlrev_b32 v8, 4, v0')
        e(f'v_add_u32 v9, {28*1024}, v8')
        e('s_mov_b32 s73, s74')
        hs = 's[40:43]'
        if 'hfake' in self.opt:
            hs = 's[44:47]'
            e('s_lshr_b32 s62, s31, 2\ns_lshl_b32 s62, s62, 20\ns_lshl_b32 s63, s39, 18\ns_add_u32 s62, s62, s63\ns_mul_i32 s63, s77, 28672\ns_add_u32 s62, s62, s63')
        e('v_cmp_ne_u64 vcc, s[70:71], v[6:7]')
        e('s_cbranch_vccz L_HAOK')
        self.poll64(4, 's75', 6, sleep=self.o('hsleep', 1))
        e('L_HAOK:')
        e(f's_add_u32 s75, s75, {WS_FH2 - WS_FH}')
        self.stamp(7)
        if 'g2st' in self.opt: e('s_memrealtime s[98:99]\ns_waitcnt lgkmcnt(0)\ns_sub_u32 s92, s98, s94\ns_mul_i32 s92, s92, 10\ns_add_u32 s92, s92, s80')
        vm = VM()
        free = [208, 216, 224, 232, 240, 248]
        D = self.o('hD', 6)
        bt = {}
        def hload(i):
            d = free.pop(0)
            j = 2 * (i // 14) + (i & 1)
            if i == 14:
                vm.wait(e, bt['b'])
                e('v_cmp_ne_u64 vcc, s[70:71], v[6:7]')
                e('s_cbranch_vccz L_HBOK')
                self.poll64(4, 's75', 6, sleep=self.o('hsleep', 1))
                e('L_HBOK:')
                self.stamp(4)
            e('s_lshl_b32 s60, s73, 8\ns_add_u32 s60, s60, s62')
            if j: e(f's_add_u32 s60, s60, {j * HJ}')
            if i & 1: e('s_add_u32 s73, s73, 4')
            lf = '' if 'hldplain' in self.opt else 'sc1'
            e(f'buffer_load_dwordx4 v[{d}:{d+3}], v8, {hs}, s60 offen {lf}')
            e(f'buffer_load_dwordx4 v[{d+4}:{d+7}], v9, {hs}, s60 offen {lf}')
            if i & 1: e('s_cmp_eq_u32 s73, 28\ns_cselect_b32 s73, 0, s73')
            t = vm.issue(2)
            if i == self.o('pbat', 8):
                e('buffer_load_dwordx2 v[6:7], v4, s[40:43], s75 offen sc1')
                bt['b'] = vm.issue()
            return (t, d)
        tok = {}
        nload = 0
        while nload < min(D, 6):
            tok[nload] = hload(nload); nload += 1
        wreg = {i: W + 8 * i for i in range(16)}
        for i in range(28):
            pre = []
            if 16 <= i + 1 < 28:
                wreg[i + 1] = free.pop(0)
                pre = self.wd_read(wreg[i + 1], i + 1)
            vm.wait(e, tok[i][0])
            if i >= 16: e('s_waitcnt lgkmcnt(0)')
            wd = wreg[i]; hh = tok[i][1]
            k = 0
            for tt in range(2):
                for ct in range(2):
                    a = ACC + (ct * 2 + tt) * 16
                    c = '0' if i == 0 else f'v[{a}:{a+15}]'
                    if 'g2nomf' not in self.opt: e(f'v_mfma_f32_32x32x16_bf16 v[{a}:{a+15}], v[{wd+4*ct}:{wd+4*ct+3}], v[{hh+4*tt}:{hh+4*tt+3}], {c}')
                    if k < len(pre): e(pre[k]); k += 1
            free.append(hh); free.append(wd)
            if 'g2st' in self.opt and i in (0, 3, 7, 11, 15, 21): self.stamp({0: 1, 3: 2, 7: 3, 11: 4, 15: 9, 21: 11}[i])
            while nload < 28 and nload - i - 1 < D and len(free) > 1:
                tok[nload] = hload(nload); nload += 1
            if i == self.o('ysig', 12): self.lds_signal(2, 3, 5)
        self.stamp(8)
        e('v_and_b32 v3, 31, v0\nv_lshrrev_b32 v4, 5, v0\nv_and_b32 v5, 7, v0\nv_xor_b32 v4, v4, v5\nv_lshlrev_b32 v4, 4, v4\nv_lshl_add_u32 v4, v3, 8, v4')
        e(f's_add_u32 s60, s79, 65536')
        e('v_add_u32 v4, s60, v4')
        for q in range(1, 4): e(f'v_xor_b32 v{4+q}, {q*32}, v4')
        for tt in range(2):
            for ct in range(2):
                a = ACC + (ct * 2 + tt) * 16
                for q in range(4):
                    e(f'ds_write_b128 v{4+q}, v[{a+4*q}:{a+4*q+3}] offset:{tt*49152 + ct*128}')
        e('s_waitcnt lgkmcnt(0)')
        self.stamp(10)
        e('s_barrier')
        self.dump_stamps()
        e('s_endpgm')

    def stats_issue(self, Q, t):
        e = self.e
        e(f'v_bfe_u32 v{t}, v0, 3, 1\nv_lshlrev_b32 v{t}, 10, v{t}\nv_lshrrev_b32 v{t+1}, 4, v0\nv_lshl_add_u32 v{t}, v{t+1}, 7, v{t}\nv_and_b32 v{t+1}, 7, v0\nv_lshl_add_u32 v{t}, v{t+1}, 4, v{t}')
        e('s_lshl_b32 s60, s31, 5\ns_add_u32 s60, s60, s32\ns_lshl_b32 s60, s60, 2\ns_and_b32 s61, s30, 3\ns_add_u32 s60, s60, s61\ns_lshl_b32 s60, s60, 11')
        for j in range(2):
            e(f'buffer_load_dwordx4 v[{Q+4*j}:{Q+4*j+3}], v{t}, s[44:47], s60 offen offset:{j*512}')

    def stats_finish(self, Q, G, ones):
        e = self.e
        for j in range(2):
            q = f'v[{Q+4*j}:{Q+4*j+3}]'
            e(f'v_mfma_f32_16x16x32_bf16 v[{G}:{G+3}], {q}, {q}, ' + ('0' if j == 0 else f'v[{G}:{G+3}]'))
            e(f'v_mfma_f32_16x16x32_bf16 v[{G+4}:{G+7}], {q}, v[{ones}:{ones+3}], ' + ('0' if j == 0 else f'v[{G+4}:{G+7}]'))
        e(f'v_lshrrev_b32 v{G+8}, 4, v0\nv_mul_u32_u24 v{G+8}, 20, v{G+8}\nv_sub_u32 v{G+8}, v0, v{G+8}\nv_mov_b32 v{G+9}, 0')
        for i in range(4):
            e(f'v_cmp_eq_u32 vcc, {i}, v{G+8}')
            e(f'v_cndmask_b32 v{G+9}, v{G+9}, v{G+i}, vcc')
        e(f'v_add_f32 v{G+4}, v{G+4}, v{G+5}\nv_add_f32 v{G+6}, v{G+6}, v{G+7}')
        for mod in ('quad_perm:[1,0,3,2]', 'quad_perm:[2,3,0,1]', 'row_half_mirror', 'row_mirror'):
            e(f'v_add_f32_dpp v{G+9}, v{G+9}, v{G+9} {mod} row_mask:0xf bank_mask:0xf')
        e(f'v_add_f32 v{G+4}, v{G+4}, v{G+6}')
        e(f'v_mov_b32 v{G}, v{G+9}\nv_mov_b32 v{G+5}, v{G+4}')
        e(f'v_permlane16_swap_b32 v{G}, v{G+9}\nv_permlane16_swap_b32 v{G+4}, v{G+5}')
        e(f'v_add_f32 v{G}, v{G}, v{G+9}\nv_add_f32 v{G+4}, v{G+4}, v{G+5}')
        e(f'v_mul_f32 v{G+4}, {f2u(1/512):#x}, v{G+4}')
        e(f'v_mul_f32 v{G+1}, v{G+4}, v{G+4}')
        e(f'v_mul_f32 v{G}, {f2u(1/512):#x}, v{G}')
        e(f'v_sub_f32 v{G}, v{G}, v{G+1}')
        e(f'v_max_f32 v{G}, 0, v{G}')
        e(f'v_cvt_pk_bf16_f32 v{G}, v{G}, v{G}\nv_lshlrev_b32 v{G}, 16, v{G}')
        e(f'v_add_f32 v{G}, {f2u(1e-5):#x}, v{G}')
        e(f'v_cvt_pk_bf16_f32 v{G}, v{G}, v{G}\nv_lshlrev_b32 v{G}, 16, v{G}')
        e(f'v_sqrt_f32 v{G}, v{G}')
        e(f'v_lshrrev_b32 v{G+1}, 2, v0')
        e(f'v_cvt_pk_bf16_f32 v{G+2}, v{G+4}, v{G}')
        e(f'v_mov_b32 v{G+3}, s70')
        e(f's_lshl_b32 s60, s31, 5\ns_add_u32 s60, s60, s32\ns_lshl_b32 s60, s60, 2\ns_and_b32 s61, s30, 3\ns_add_u32 s60, s60, s61\ns_lshl_b32 s60, s60, 4\ns_add_u32 s60, s60, {WS_STATS}')
        e('s_mov_b32 exec_lo, 1\ns_mov_b32 exec_hi, 1')
        e(f'buffer_store_dwordx2 v[{G+2}:{G+3}], v{G+1}, s[40:43], s60 offen sc1')
        e('s_mov_b64 exec, -1')

    def spare(self):
        e = self.e
        e('L_SPARE:')
        e('s_lshr_b32 s62, s30, 2')
        e('s_and_b32 s63, s30, 3')
        e('v_lshrrev_b32 v1, 5, v0\nv_and_b32 v2, 31, v0')
        e('v_lshlrev_b32 v15, 13, v1\nv_lshl_add_u32 v15, v2, 4, v15')
        e('s_lshl_b32 s64, s3, 16\ns_lshl_b32 s60, s63, 14\ns_add_u32 s64, s64, s60\ns_lshl_b32 s60, s62, 9\ns_add_u32 s64, s64, s60')
        e('s_add_u32 s65, s64, 4096')
        for j in range(3):
            e(f's_sub_u32 s60, s64, {(3-j)*1024}')
            e(f'v_add_u32 v{10+j}, s60, v15')
        e('v_lshlrev_b32 v9, 6, v2')
        e('s_lshl_b32 s67, s62, 11')
        e('v_lshlrev_b32 v8, 4, v0')
        self.kwait()
        vm = VM()
        Q = 16; K = 48; V = 92; SH = 124
        self.srd(48, 6, 2097152)
        self.srd(52, 8, 2097152)
        self.srd(56, 10, 4096)
        spst = self.o('spst', 0)
        e('v_mov_b32 v250, 0\nv_lshlrev_b32 v3, 2, v0')
        e(f'ds_write_b32 v3, v250 offset:{L_CNT}')
        e('s_waitcnt lgkmcnt(0)')
        LB = e.newlabel('SPB')
        e(f's_cmp_eq_u32 s62, 0\ns_cbranch_scc1 {LB}\ns_barrier\n{LB}:')
        for j in range(8):
            e(f'buffer_load_dwordx4 v[{K+12+4*j}:{K+12+4*j+3}], v15, s[48:51], s{64 + j//4} offen offset:{(j%4)*1024}')
        for j in range(4):
            e(f'buffer_load_dwordx4 v[{SH+4*j}:{SH+4*j+3}], v9, s[56:59], s67 offen offset:{j*16}')
        for j in range(3):
            e(f'buffer_load_dwordx4 v[{K+4*j}:{K+4*j+3}], v{10+j}, s[48:51], 0 offen')
        tokK = vm.issue(15)
        for j in range(8):
            e(f'buffer_load_dwordx4 v[{V+4*j}:{V+4*j+3}], v15, s[52:55], s{64 + j//4} offen offset:{(j%4)*1024}')
        tokV = vm.issue(8)
        self.stats_issue(Q, 13); vm.issue(2)
        LB = e.newlabel('SPB')
        e(f's_cmp_lg_u32 s62, 0\ns_cbranch_scc1 {LB}\ns_barrier\n{LB}:')
        self.srd(56, 26, 256)
        for i in range(4): e(f'v_mov_b32 v{244+i}, 0x3f803f80')
        KU = 140; VU = 162; WU = 178; R = 186; O = 204; SG = 220
        e('s_lshl_b32 s60, s63, 1\ns_sub_u32 s60, 7, s60')
        e('v_sub_u32 v1, s60, v1\nv_and_b32 v3, 7, v0\nv_xor_b32 v1, v1, v3\nv_lshlrev_b32 v1, 4, v1\nv_lshl_add_u32 v1, v2, 10, v1')
        e('s_lshl_b32 s60, s62, 15\ns_add_u32 s60, s60, 65536\nv_add_u32 v1, s60, v1')
        e('v_lshrrev_b32 v2, 3, v0\nv_lshlrev_b32 v6, 4, v3\nv_lshl_add_u32 v6, v2, 10, v6')
        e('s_lshl_b32 s60, s30, 13\ns_add_u32 s60, s60, 65536\nv_add_u32 v6, s60, v6')
        e('v_xor_b32 v3, v3, v2\nv_lshlrev_b32 v3, 4, v3\nv_lshl_add_u32 v7, v2, 15, v3')
        e(f's_lshl_b32 s66, s30, 18\ns_lshl_b32 s61, s3, 7\ns_sub_u32 s66, s66, s61\ns_add_u32 s66, s66, {WS_KVT + 3968}')
        e('s_lshl_b32 s60, s62, 2\nv_mov_b32 v14, s60')
        vm.wait(e, tokK)
        if spst == 1: self.stamp(1)
        def flush(d):
            self.lds_wait(12, 4 * (d + 1), 14, 4)
            for cc in range(2):
                e(f'ds_read_b128 v[{SG+4*cc}:{SG+4*cc+3}], v6 offset:{(2*d+cc)*128}')
        def flush2(d):
            for cc in range(2):
                e(f's_waitcnt lgkmcnt({1-cc})')
                e(f'buffer_store_dwordx4 v[{SG+4*cc}:{SG+4*cc+3}], v7, s[40:43], s66 offen sc1'); vm.issue()
                e('s_add_u32 s66, s66, 4096')
        for d in range(4):
            for j in range(11):
                e(f'v_lshlrev_b32 v{KU+2*j}, 16, v{K+4*j+d}')
                e(f'v_and_b32 v{KU+2*j+1}, 0xffff0000, v{K+4*j+d}')
            if d: flush(d - 1)
            for cc in range(2):
                s_ = SH + 4 * d + 2 * cc
                e(f'v_lshlrev_b32 v{WU+0+cc}, 16, v{s_}')
                e(f'v_and_b32 v{WU+2+cc}, 0xffff0000, v{s_}')
                e(f'v_lshlrev_b32 v{WU+4+cc}, 16, v{s_+1}')
                e(f'v_and_b32 v{WU+6+cc}, 0xffff0000, v{s_+1}')
            for j in range(8): e(f'v_pk_mul_f32 {pr(R+2*j)}, {pr(KU+2*j)}, {pr(WU+6)}')
            if d == self.o('nonat', 2):
                e('buffer_load_dwordx2 v[248:249], v250, s[56:59], 0 offen sc1')
                tokN = vm.issue()
            if d: flush2(d - 1)
            for tap in (2, 1, 0):
                for j in range(8): e(f'v_pk_fma_f32 {pr(R+2*j)}, {pr(KU+2*(j+3-tap))}, {pr(WU+2*tap)}, {pr(R+2*j)}')
            if d == 0:
                vm.wait(e, tokV)
                if spst == 1: self.stamp(2)
            for j in range(8):
                e(f'v_lshlrev_b32 v{VU+2*j}, 16, v{V+4*j+d}')
                e(f'v_and_b32 v{VU+2*j+1}, 0xffff0000, v{V+4*j+d}')
            for j in range(8): e(f'v_pk_mul_f32 {pr(R+2*j)}, {pr(R+2*j)}, {pr(VU+2*j)}')
            o = O + (d & 1) * 8
            for cc in range(2):
                for q in range(4):
                    e(f'v_cvt_pk_bf16_f32 v{o+4*cc+q}, v{R+2*(7-2*q)+cc}, v{R+2*(6-2*q)+cc}')
                e(f'ds_write_b128 v1, v[{o+4*cc}:{o+4*cc+3}] offset:{(2*d+cc)*128}')
            e('s_waitcnt lgkmcnt(0)')
            self.lds_signal(12, 14, 4)
            if d == 3: self.stamp(4)
            if spst == 1 and d == 0: self.stamp(12)
            if spst == 2 and d < 3: self.stamp([1, 2, 12][d])
        flush(3); flush2(3)
        self.lds_signal(14, 250, 4)
        vm.wait(e, tokN)
        e('v_readfirstlane_b32 s70, v248\nv_readfirstlane_b32 s71, v249')
        e('s_cmp_lg_u32 s71, 0\ns_cbranch_scc1 L_SPN')
        self.get_nonce_blocking(248)
        e('L_SPN:')
        e(f's_xor_b32 s71, s70, {TAGX}')
        e('s_cmp_lg_u32 s62, 0\ns_cbranch_scc1 L_SPNS')
        self.stats_finish(Q, 228, 244)
        if not spst: self.stamp(2)
        e('L_SPNS:')
        e('v_mov_b32 v68, 0')
        e(f's_lshl_b32 s60, s30, 5\ns_add_u32 s60, s60, s3\ns_lshl_b32 s60, s60, 7\ns_add_u32 s60, s60, {WS_FKV}')
        e('v_mov_b32 v4, s70\nv_mov_b32 v5, s71\nv_lshlrev_b32 v6, 15, v0')
        e('s_waitcnt vmcnt(0)')
        e(f's_mov_b64 exec, {(1 << self.o("kvrep", 8)) - 1}')
        e('buffer_store_dwordx2 v[4:5], v6, s[40:43], s60 offen sc1')
        e('s_mov_b64 exec, -1')
        self.stamp(3)
        e('s_cmp_ge_u32 s30, 4\ns_cbranch_scc1 L_SPH')
        self.conv_loads_h()
        self.kvflag_addr()
        e('s_branch L_KVPOLL')
        e('L_SPH:')
        self.lds_wait(14, 8, 68, 69)
        vm = VM()
        self.wd_setup()
        wtok = {}
        for i in range(4): wtok[i] = self.wd_dma(vm, i)
        self.wd_tail(vm, wtok)
        self.hflag_addr()
        e('v_mov_b32 v6, 0\nv_mov_b32 v7, 0')
        e('s_branch L_G2')

    def build(self):
        self.prologue()
        self.g1_helper()
        self.g2()
        self.g1_mfma()
        self.conv()
        self.nostamp = False
        self.spare()
        self.e('L_END:')
        body = self.e.text()
        hdr = open('parallel_sum__ssm_conv_h3__glu_gated_geglu__prompt.s.ref').read().split('; Override launch')[0]
        s = hdr + f'; @launch grid=(256,1,1) block=(512,1,1) lds={LDS_TOTAL}\n'
        s += f'.amdgcn_target "amdgcn-amd-amdhsa--gfx950"\n.text\n.globl {NAME}\n.p2align 8\n.type {NAME},@function\n{NAME}:\n'
        s += body + '    s_endpgm\n'
        s += f'''.section .rodata,"a"
.p2align 6
.amdhsa_kernel {NAME}
  .amdhsa_next_free_vgpr 256
  .amdhsa_next_free_sgpr 102
  .amdhsa_accum_offset 256
  .amdhsa_group_segment_fixed_size 0
  .amdhsa_kernarg_size 104
  .amdhsa_user_sgpr_count 2
  .amdhsa_user_sgpr_kernarg_segment_ptr 1
  .amdhsa_system_sgpr_workgroup_id_x 1
.end_amdhsa_kernel
'''
        return s

if __name__ == '__main__':
    out = sys.argv[1]
    stamps = 'stamps' in sys.argv[2:]
    open(out, 'w').write(Gen(stamps=stamps, opt=set(sys.argv[2:])).build())
```
